```python
import torch

def _softmax(x, axis=-1):
    return torch.softmax(x, dim=axis)

def _gelu(x):
    return torch.nn.functional.gelu(x, approximate='tanh')

def _silu(x):
    return torch.nn.functional.silu(x)

def _sigmoid(x):
    return torch.sigmoid(x)

def _layernorm(x, axis=-1, eps=1e-05):
    m = x.mean(dim=axis, keepdim=True)
    v = x.var(dim=axis, keepdim=True, unbiased=False)
    return (x - m) / torch.sqrt(v + eps)

def _scatter_add(tgt, idx, src, axis=0):
    return tgt.clone().index_add_(axis, idx, src)

def _segment_sum(src, seg, n):
    out = torch.zeros((n,) + src.shape[1:], dtype=src.dtype)
    return out.index_add_(0, seg, src)

def _pad(x, pw):
    flat = tuple((v for pair in reversed(pw) for v in pair))
    return torch.nn.functional.pad(x, flat)
kernel_name = 'gather_scatter__tensor_product_equiv_equiformer__graph'

def setup_inputs():

    _w = lambda a: (lambda t: t.to(torch.bfloat16) if t.is_floating_point() else t)(torch.as_tensor(a))
    N, deg, C, De = (10000, 64, 64, max(16, 1))
    E = N * deg
    src = (lambda lo, hi, *s: torch.randint(lo, hi, s))(0, N, E).to(torch.int64)
    dst = (lambda lo, hi, *s: torch.randint(lo, hi, s))(0, N, E).to(torch.int64)
    rvec = (lambda *s: torch.randn(*s, dtype=torch.bfloat16) * 0.05)(E, 3).to(float)
    rn = (torch.linalg.norm(rvec, dim=-1, keepdim=True) + 1e-06).to(float)
    rhat = (rvec / rn).to(float)
    eps = torch.zeros((3, 3, 3), dtype=float)
    eps[0, 1, 2] = eps[1, 2, 0] = eps[2, 0, 1] = 1.0
    eps[0, 2, 1] = eps[2, 1, 0] = eps[1, 0, 2] = -1.0
    return {'x': _w((lambda *s: torch.randn(*s, dtype=torch.bfloat16) * 0.2)(N, 4 * C).to(float)), 'rhat': _w(rhat), 'e_attr': _w((lambda *s: torch.randn(*s, dtype=torch.bfloat16) * 0.2)(E, De).to(float)), 'src': _w(src), 'dst': _w(dst), 'w_rad': _w((lambda *s: torch.randn(*s, dtype=torch.bfloat16) * 0.2)(De, 5 * C).to(float)), 'w_si0': _w((lambda *s: torch.randn(*s, dtype=torch.bfloat16) * 0.2)(2 * C, C).to(float)), 'w_si1': _w((lambda *s: torch.randn(*s, dtype=torch.bfloat16) * 0.05)(3 * C, C).to(float)), 'cg_eps': _w(eps)}

def reference(x, rhat, e_attr, src, dst, w_rad, w_si0, w_si1, cg_eps):
    N = x.shape[0]
    C = w_si0.shape[1]
    E = rhat.shape[0]
    x0 = x[:, :C].clone()
    x1 = x[:, C:].reshape(N, 3, C)
    R = (e_attr @ w_rad).reshape(E, 5, C)
    f0 = x0[src]
    f1 = x1[src]
    Y1 = rhat
    p00_0 = f0 * R[:, 0, :]
    p11_0 = torch.einsum('ejc,ej->ec', f1, Y1) * R[:, 1, :]
    p01_1 = torch.einsum('ec,ej->ejc', f0, Y1) * R[:, 2, :][:, None, :]
    p10_1 = f1 * R[:, 3, :][:, None, :]
    p11_1 = torch.einsum('ijk,ekc,ej->eic', cg_eps, f1, Y1) * R[:, 4, :][:, None, :]
    m0 = torch.concatenate([p00_0, p11_0], axis=-1) @ w_si0
    m1 = torch.einsum('ejp,pc->ejc', torch.concatenate([p01_1, p10_1, p11_1], axis=-1), w_si1)
    agg0 = _segment_sum(m0, dst, N)
    agg1 = _segment_sum(m1.reshape(E, 3 * C), dst, N).reshape(N, 3, C)
    gate = _sigmoid(agg0)
    out1 = agg1 * gate[:, None, :]
    return torch.concatenate([agg0, out1.reshape(N, 3 * C)], axis=-1)
```

```python
import re

class Asm:
    def __init__(self):
        self.lines = []
    def __call__(self, s):
        for l in s.strip('\n').split('\n'):
            l = l.strip()
            if l:
                self.lines.append(l)
    def label(self, name):
        self.lines.append(name + ':')
    def raw(self, s):
        self.lines.append('\x00' + s)
    def text(self):
        out = []
        for l in self.lines:
            if l.startswith('\x00'):
                out.append(l[1:])
            elif l.endswith(':'):
                out.append(l)
            else:
                out.append('    ' + l)
        return '\n'.join(out) + '\n'

def regs(tok):
    tok = tok.strip().lstrip('-').strip('|')
    m = re.fullmatch(r'([vs])\[(\d+):(\d+)\]', tok)
    if m:
        return [m.group(1) + str(i) for i in range(int(m.group(2)), int(m.group(3)) + 1)]
    m = re.fullmatch(r'([vs])(\d+)', tok)
    if m:
        return [tok]
    if tok == 'vcc':
        return ['vcc']
    if tok == 'exec':
        return ['exec']
    if tok == 'm0':
        return ['m0']
    return []

TRANS = ('v_exp_f32', 'v_rcp_f32', 'v_log_f32', 'v_rsq_f32', 'v_sqrt_f32')

def parse(l):
    l = l.split(';')[0].strip()
    if not l:
        return None
    parts = l.split(None, 1)
    op = parts[0]
    rest = parts[1] if len(parts) > 1 else ''
    ops = []
    cur = ''
    depth = 0
    for ch in rest:
        if ch == '[' or ch == '(':
            depth += 1
        if ch == ']' or ch == ')':
            depth -= 1
        if ch == ',' and depth == 0:
            ops.append(cur.strip()); cur = ''
        else:
            cur += ch
    if cur.strip():
        ops.append(cur.strip())
    mods = ''
    if ops:
        sp = ops[-1].split(None, 1)
        ops[-1] = sp[0]
        if len(sp) > 1:
            mods = sp[1]
    return op, ops, mods

def classify(op, ops, mods):
    d = dict(kind='other', w=[], r=[], dpp=False, passes=0, srcc=[], lanesel=[])
    if op.startswith('v_mfma'):
        d['kind'] = 'mfma'
        d['passes'] = 8 if '32x32x16' in op else 4
        d['w'] = regs(ops[0]); d['r'] = regs(ops[1]) + regs(ops[2]); d['srcc'] = regs(ops[3])
    elif op.startswith('v_'):
        d['kind'] = 'valu'
        d['dpp'] = '_dpp' in op or 'row_' in mods or 'quad_perm' in mods
        if op.startswith('v_cmp'):
            d['w'] = regs(ops[0]); d['r'] = sum([regs(o) for o in ops[1:]], [])
            if op.startswith('v_cmpx'):
                d['w'] += ['exec']
        elif op.startswith('v_permlane') and 'swap' in op:
            d['w'] = regs(ops[0]) + regs(ops[1]); d['r'] = regs(ops[0]) + regs(ops[1])
        elif op in ('v_add_co_u32', 'v_sub_co_u32', 'v_addc_co_u32', 'v_subb_co_u32'):
            d['w'] = regs(ops[0]) + regs(ops[1]); d['r'] = sum([regs(o) for o in ops[2:]], [])
        else:
            d['w'] = regs(ops[0]); d['r'] = sum([regs(o) for o in ops[1:]], [])
            if op.startswith('v_fmac') or op.startswith('v_mac') or d['dpp'] or op.startswith('v_writelane'):
                d['r'] += regs(ops[0])
            if op.startswith('v_cndmask') and len(ops) == 3:
                d['r'] += ['vcc']
            if op.startswith('v_readlane') or op.startswith('v_writelane'):
                d['lanesel'] = regs(ops[2])
    elif op.startswith('s_'):
        d['kind'] = 'salu'
        if op.startswith('s_cmp') or op.startswith('s_cbranch') or op.startswith('s_branch') or op in (
                's_waitcnt', 's_nop', 's_barrier', 's_endpgm', 's_setprio', 's_set_gpr_idx_off', 's_setpc_b64'):
            d['r'] = sum([regs(o) for o in ops], [])
        elif op == 's_set_gpr_idx_on':
            d['w'] = ['m0']; d['r'] = regs(ops[0])
        else:
            d['w'] = regs(ops[0]); d['r'] = sum([regs(o) for o in ops[1:]], [])
            if 'saveexec' in op:
                d['w'] += ['exec']
    elif op.startswith('ds_'):
        d['kind'] = 'ds'
        if 'read' in op or 'rtn' in op or 'permute' in op:
            d['w'] = regs(ops[0]); d['r'] = sum([regs(o) for o in ops[1:]], [])
        else:
            d['r'] = sum([regs(o) for o in ops], [])
    elif op.startswith('buffer_') or op.startswith('global_'):
        d['kind'] = 'vmem'
        if ' lds' in ' ' + mods:
            d['r'] = sum([regs(o) for o in ops], []) + ['m0']; d['ldsdma'] = True
        elif 'load' in op:
            d['w'] = regs(ops[0]); d['r'] = sum([regs(o) for o in ops[1:]], [])
        else:
            d['r'] = sum([regs(o) for o in ops], [])
            if 'x3' in op or 'x4' in op:
                d['widestore'] = regs(ops[0])
    return d

def check(lines):
    hist = []
    probs = []
    for idx, l in enumerate(lines):
        if l.startswith('\x00') or l.endswith(':') or l.startswith('.') or l.startswith(';'):
            continue
        p = parse(l)
        if p is None:
            continue
        op, ops, mods = p
        d = classify(op, ops, mods)
        dist = 0
        for (pop, pd, pstates, pl) in reversed(hist):
            need = 0
            pw = set(pd['w'])
            rd = set(d['r']) | set(d['srcc'])
            if pd['kind'] == 'valu':
                vw = {x for x in pw if x[0] == 'v' and x != 'vcc'}
                sw = {x for x in pw if x[0] == 's' or x == 'vcc'}
                if d['kind'] == 'valu' and d['dpp'] and vw & set(d['r']): need = max(need, 2)
                if d['kind'] == 'mfma' and vw & rd: need = max(need, 2)
                if op.startswith('v_permlane') and vw & rd: need = max(need, 2)
                if (op.startswith('v_readlane') or op.startswith('v_readfirstlane')) and vw & rd: need = max(need, 1)
                if d['kind'] == 'vmem' and sw & rd: need = max(need, 5)
                if d['kind'] == 'valu' and sw & rd: need = max(need, 2)
                if d['lanesel'] and sw & set(d['lanesel']): need = max(need, 4)
                if pop in TRANS and d['kind'] in ('valu', 'mfma') and vw & rd: need = max(need, 1)
                if 'exec' in pw:
                    if d['kind'] == 'valu' and d['dpp']: need = max(need, 5)
                    if d['kind'] == 'mfma' or op.startswith('v_permlane') or op.startswith('v_read'): need = max(need, 4)
            if pd['kind'] in ('ds', 'vmem') and d['kind'] == 'valu' and d['dpp']:
                pass
            if pd['kind'] == 'salu' and 'm0' in pw and d.get('ldsdma'): need = max(need, 1)
            if pd['kind'] == 'mfma':
                n = 12 if pd['passes'] == 8 else 8
                if d['kind'] == 'mfma':
                    if pw & set(d['r']): need = max(need, n)
                    if pw & set(d['srcc']) and not (d['srcc'] == pd['w'] and d['passes'] == pd['passes']):
                        need = max(need, n - 2)
                    if pw & set(d['w']) and not (d['w'] == pd['w'] and d['passes'] == pd['passes']):
                        need = max(need, n)
                else:
                    if pw & (set(d['r']) | set(d['w'])): need = max(need, n)
                    if d['kind'] == 'valu' and set(pd['srcc']) & set(d['w']):
                        need = max(need, 7 if pd['passes'] == 8 else 3)
            if pd.get('widestore') and set(pd['widestore']) & set(d['w']):
                need = max(need, 2)
            if need > dist:
                probs.append(f'line {idx}: "{l}" needs {need} after "{pl}" (has {dist})')
            dist += pstates
            if dist > 20:
                break
        st = 1
        if op == 's_nop':
            st = int(ops[0], 0) + 1
        hist.append((op, d, st, l))
        if op in ('s_branch', 's_endpgm', 's_setpc_b64'):
            hist = []
        if len(hist) > 40:
            hist = hist[-40:]
    return probs
```

```python
def gen_k2(a, G):
    XR, AS, WT, REC, CAP, EL, ZERO, HIST, FLAG, START, ONE = [G[k] for k in
        'XR AS WT REC CAP EL ZERO HIST FLAG START ONE'.split()]
    TAB, WTG, SIF, ACC, ENT_STRIDE, PSTR, NSTASH = [G[k] for k in 'TAB WTG SIF ACC ENT_STRIDE PSTR NSTASH'.split()]
    srd, wave_scan = G['srd'], G['wave_scan']

    sW = 's3'
    SX, SA, SWS, SO = 4, 8, 12, 16
    sLo, sWin, sFb, sMore = 's20', 's21', 's22', 's23'
    sN, sP, sRem, sLook = 's24', 's25', 's26', 's27'
    sCn = 28
    sCn2 = 30
    MASK = 32
    sSoff, sInc, sWrapInc = 's64', 's65', 's66'
    sXb = 's67'
    sAb = 's68'
    sPl = 's69'
    sPn = 's70'
    sNst = 's71'
    sR4, sR2 = 's72', 's73'
    sT0, sT1, sT2, sT3 = 's74', 's75', 's76', 's77'
    s512 = 's78'
    sStg = 's79'
    sPm3 = 's80'
    sBase = 's81'
    sFirst = 's82'
    sHi = 's83'
    sNt = 's84'
    sUn = 's85'
    import os
    WD = int(os.environ.get('WD', '0'))
    sWD = 's86'
    PROF = int(os.environ.get('PROF', '0'))
    ANT = os.environ.get('ANT', '')
    EX = os.environ.get('EX', '').split(',')
    XSZ = 0 if int(os.environ.get('NOX', '0')) else 5120000
    ASZ = 0 if int(os.environ.get('NOA', '0')) else 20480000
    def seg(i):
        if PROF != 2: return
        a('s_memtime s[88:89]')
        a('s_waitcnt lgkmcnt(0)')
        if i >= 0:
            a('s_sub_u32 s89, s88, s87')
            a(f's_add_u32 s{90+i}, s{90+i}, s89')
        a('s_mov_b32 s87, s88')
    def stamp(i, real=False):
        if not PROF: return
        if PROF == 2 and i in (1, 2, 3):
            a(f's_mov_b32 s{90+i}, 0')
            return
        a(f's_memrealtime s[88:89]' if real else 's_memtime s[88:89]')
        a('s_waitcnt lgkmcnt(0)')
        a(f's_mov_b32 s{90+i}, s88')

    n = [1]
    def alloc(k=1, align=1):
        while n[0] % align: n[0] += 1
        r = n[0]; n[0] += k
        return r
    vLane = alloc()
    vAA = alloc(16, 2)
    vBa = alloc(4); vXc = alloc(4)
    vAbase = alloc(); vAmask = alloc(); vA = alloc()
    vYs = alloc(); vYa = alloc(); vSa = alloc(); vEa = alloc(); vE = alloc()
    vSrc = alloc(4, 2)
    vYv = alloc(); vSl = alloc()
    vAf = alloc(8, 2); vT = alloc(4, 2)
    vB = alloc(16, 2)
    vP = alloc(20)
    vSt = alloc(4 * NSTASH)
    assert n[0] <= 128, n[0]
    print('vgprs used below acc:', n[0])
    ACC0 = 128
    def acc(T, ct): return ACC0 + (T * 4 + ct) * 16
    def vr(b, k): return f'v[{b}:{b+k-1}]'

    a.label('k2_kernel')
    a('s_cmp_ge_u32 s2, 250')
    a('s_cbranch_scc1 k2_end')
    stamp(0)
    stamp(8, True)
    srd(a, SWS, 88, 0x10000000)
    srd(a, SX, 0, 5120000)
    srd(a, SA, 16, 20480000)
    srd(a, SO, 72, 5120000)
    a(f'''
    v_lshrrev_b32 v2, 6, v0
    v_and_b32 v{vLane}, 63, v0
    v_readfirstlane_b32 {sW}, v2
    s_and_b32 {sT0}, s2, 7
    s_lshl_b32 {sT0}, {sT0}, 5
    s_lshr_b32 {sT1}, s2, 3
    s_add_u32 {sT0}, {sT0}, {sT1}
    s_lshl_b32 {sT0}, {sT0}, 2
    s_add_u32 {sT0}, {sT0}, {TAB}
    s_lshl_b32 {sT1}, {sW}, 15
    s_add_u32 {sT0}, {sT0}, {sT1}
    v_and_b32 v2, 31, v0
    v_lshlrev_b32 v2, 10, v2
    v_add_u32 v2, {sT0}, v2
    s_lshl_b32 {sXb}, {sW}, 13
    s_lshl_b32 {sAb}, {sW}, 12
    s_add_u32 {sAb}, {sAb}, {AS}
    s_movk_i32 {s512}, 0x200
    s_mov_b32 {sHi}, 0xffff0000
    s_mov_b32 {sLo}, 0
    s_mov_b32 {sWin}, 32
    s_mov_b32 {sFb}, 0
    s_mov_b32 {sFirst}, 1
    s_mov_b32 {sWD}, 400000
    v_lshlrev_b32 v3, 4, v{vLane}
    s_lshl_b32 {sT1}, {sW}, 10
    s_add_u32 {sT2}, {sT1}, {WTG}
    v_add_u32 v4, {sT2}, v3
    s_add_u32 {sT1}, {sT1}, {WT}
    s_mov_b32 m0, {sT1}
    s_waitcnt lgkmcnt(0)
    buffer_load_dword v126, v2, s[{SWS}:{SWS+3}], 0 offen
    buffer_load_dwordx4 v4, s[{SWS}:{SWS+3}], 0 offen lds
    s_add_u32 m0, {sT1}, 8192
    v_add_u32 v5, 8192, v4
    buffer_load_dwordx4 v5, s[{SWS}:{SWS+3}], 0 offen lds
    s_cmp_ge_u32 {sW}, 4
    s_cbranch_scc1 k2_w2
    s_add_u32 m0, {sT1}, 16384
    v_add_u32 v5, 16384, v4
    buffer_load_dwordx4 v5, s[{SWS}:{SWS+3}], 0 offen lds
    ''')
    a.label('k2_w2')
    vTab = 126
    a(f'''
    v_bfe_u32 v2, v{vLane}, 2, 2          ; r
    v_and_b32 v3, 3, v{vLane}             ; c'
    v_lshrrev_b32 v4, 5, v{vLane}         ; hi
    v_bfe_u32 v5, v{vLane}, 4, 1
    v_lshlrev_b32 v6, 10, v2
    v_lshl_add_u32 v6, v4, 9, v6
    v_lshl_add_u32 v6, v5, 5, v6
    v_lshl_add_u32 v6, v3, 3, v6
    v_add_u32 v6, {sXb}, v6
    ''')
    for ct in range(4):
        a(f'v_xor_b32 v7, {ct}, v2')
        a(f'v_lshl_add_u32 v{vBa+ct}, v7, 6, v6')
    a(f'v_and_b32 v7, 15, v{vLane}')
    for r in range(4):
        a(f'v_xor_b32 v8, {4*r}, v7')
        a(f'v_lshlrev_b32 v{vXc+r}, 4, v8')
    a(f'''
    v_lshrrev_b32 v8, 1, v2
    v_lshlrev_b32 v8, 5, v8
    v_lshl_add_u32 v8, v4, 8, v8
    v_lshl_add_u32 v8, v3, 3, v8
    v_add_u32 v8, {sAb}, v8
    v_lshlrev_b32 v9, 3, v3
    v_add_u32 v9, {ZERO+128}, v9
    v_and_b32 v10, 1, v2
    v_cmp_eq_u32 vcc, 1, v10
    v_mov_b32 v11, 0xc00
    s_nop 0
    v_cndmask_b32 v{vAbase}, v9, v8, vcc
    v_cndmask_b32 v{vAmask}, 0, v11, vcc
    v_lshlrev_b32 v8, 4, v{vLane}
    v_add_u32 v{vSl}, {sAb}, v8
    ''')

    a.label('k2_round')
    a(f'''
    v_lshlrev_b32 v2, 4, v0
    v_add_u32 v3, {REC}, v2
    v_mov_b32 v4, 0
    v_mov_b32 v5, {sHi}
    v_mov_b32 v6, 0
    v_mov_b32 v7, {sHi}
    v_mov_b32 v8, 0x7fffff00
    v_mov_b32 v9, 0x7fffff00
    v_mov_b32 v10, 0x7fffff00
    v_mov_b32 v11, 0x7fffff00
    ds_write_b128 v3, v[4:7]
    ds_write_b128 v3, v[4:7] offset:8192
    ds_write_b128 v3, v[4:7] offset:16384
    ds_write_b128 v3, v[8:11] offset:{EL-REC}
    s_cmp_ge_u32 {sW}, 6
    s_cbranch_scc1 k2_pf_done
    ds_write_b128 v3, v[8:11] offset:{EL-REC+8192}
    s_cmp_ge_u32 {sW}, 4
    s_cbranch_scc1 k2_pf_done
    ds_write_b128 v3, v[4:7] offset:24576
    s_cmp_ge_u32 {sW}, 2
    s_cbranch_scc1 k2_pf_done
    v_cmp_eq_u32 vcc, 127, v0
    v_mov_b32 v12, 0x3f80
    v_mov_b32 v13, 0
    v_cndmask_b32 v12, 0, v12, vcc
    v_mov_b32 v14, 0
    v_mov_b32 v15, 0
    ds_write_b128 v3, v[12:15] offset:{ZERO-REC}
    ''')
    a.label('k2_pf_done')
    def ent(k, h): return 128 + (2*k + h) * 4
    def rnk(k, h): return 128 + (2*k + h) * 4 + 3
    def sla(k, h): return 192 + 2*k + h
    def msk(k, h): return MASK + 2 * (2*k + h)
    a(f'''
    v_lshrrev_b32 v2, 4, v{vLane}
    v_lshlrev_b32 v3, 2, v2
    s_lshl_b32 {sT0}, {sW}, 5
    v_add_u32 v2, {sT0}, v2
    v_mul_u32_u24 v2, {ENT_STRIDE}, v2
    v_and_b32 v4, 15, v{vLane}
    v_add_u32 v4, {sLo}, v4
    v_mad_u32_u24 v2, v4, 12, v2
    v_add_u32 v5, 16, v4
    s_add_u32 {sT1}, {sLo}, {sWin}
    s_waitcnt lgkmcnt(0)
    s_barrier
    s_waitcnt vmcnt(0)
    ''')
    stamp(1)
    for k in range(8):
        a(f'ds_bpermute_b32 v{208+k}, v3, v{vTab} offset:{16*k}')
    a(f'''
    v_lshrrev_b32 v6, 16, v{vTab}
    v_cmp_lt_u32 vcc, {sT1}, v6
    s_cmp_eq_u64 vcc, 0
    s_cbranch_scc1 k2_noflag
    v_mov_b32 v6, {FLAG}
    v_mov_b32 v7, 1
    ds_write_b32 v6, v7
    ''')
    a.label('k2_noflag')
    a('s_waitcnt lgkmcnt(0)')
    for k in range(8):
        a(f'''
        v_lshrrev_b32 v6, 16, v{208+k}
        v_and_b32 v7, 0xffff, v{208+k}
        v_min_u32 v6, {sT1}, v6
        v_mad_u32_u24 v{208+k}, v7, 12, v2
        v_cmp_lt_u32 s[{msk(k,0)}:{msk(k,0)+1}], v4, v6
        v_cmp_lt_u32 s[{msk(k,1)}:{msk(k,1)+1}], v5, v6
        v_add_u32 v{208+k}, {4*k*ENT_STRIDE}, v{208+k}
        s_mov_b64 exec, s[{msk(k,0)}:{msk(k,0)+1}]
        s_cbranch_execz k2_ld{k}
        buffer_load_dwordx3 {vr(ent(k,0),3)}, v{208+k}, s[{SWS}:{SWS+3}], 0 offen
        s_mov_b64 exec, s[{msk(k,1)}:{msk(k,1)+1}]
        s_cbranch_execz k2_ld{k}
        buffer_load_dwordx3 {vr(ent(k,1),3)}, v{208+k}, s[{SWS}:{SWS+3}], 0 offen offset:192
        ''')
        a.label(f'k2_ld{k}')
        a('s_mov_b64 exec, -1')
    a(f'''
    v_mov_b32 v6, 1
    v_mov_b32 v7, {HIST & ~0xffff}
    s_waitcnt vmcnt(0)
    ''')
    stamp(2)
    for k in range(8):
        for h in range(2):
            a(f'''
            s_mov_b64 exec, s[{msk(k,h)}:{msk(k,h)+1}]
            s_cbranch_execz k2_h{k}
            v_lshrrev_b32 v8, 26, v{ent(k,h)+2}
            v_lshl_add_u32 v{sla(k,h)}, v8, 2, v7
            ds_add_rtn_u32 v{rnk(k,h)}, v{sla(k,h)}, v6 offset:{HIST & 0xffff}
            ''')
        a.label(f'k2_h{k}')
    a(f'''
    s_mov_b64 exec, -1
    v_lshl_add_u32 v8, v{vLane}, 2, v7
    v_mov_b32 v9, {FLAG}
    s_waitcnt lgkmcnt(0)
    s_barrier
    ds_read_b32 v10, v8 offset:{HIST & 0xffff}
    ds_read_b32 v11, v9
    v_and_b32 v12, 7, v{vLane}
    v_cmp_gt_u32 s[{sT2[1:]}:{sT3[1:]}], 5, v12
    v_cmp_eq_u32 s[{sT0[1:]}:{sT1[1:]}], 4, v12
    v_and_b32 v13, 56, v{vLane}
    s_waitcnt lgkmcnt(0)
    v_add_u32 v10, 15, v10
    v_lshrrev_b32 v10, 4, v10
    v_max_u32 v10, 1, v10
    v_cndmask_b32 v10, 0, v10, s[{sT2[1:]}:{sT3[1:]}]
    v_and_b32 v14, 1, v10
    v_cmp_eq_u32 vcc, 1, v14
    v_readfirstlane_b32 {sMore}, v11
    s_nop 0
    v_lshrrev_b64 v[14:15], v13, vcc
    v_and_b32 v14, 31, v14
    v_bcnt_u32_b32 v14, v14, 0
    v_and_b32 v14, 1, v14
    v_cndmask_b32 v14, 0, v14, s[{sT0[1:]}:{sT1[1:]}]
    v_add_u32 v10, v10, v14               ; nb
    v_mov_b32 v11, v10
    ''')
    wave_scan(a, 'v11')
    a(f'''
    v_sub_u32 v12, v11, v10
    v_lshlrev_b32 v12, 4, v12
    ds_write_b32 v8, v12 offset:{START & 0xffff}
    v_readlane_b32 {sT0}, v11, 63
    s_cmp_lg_u32 {sFb}, 0
    s_cbranch_scc1 k2_fits
    s_cmp_gt_u32 {sT0}, {CAP // 16}
    s_cbranch_scc1 k2_tofb
    s_cmp_eq_u32 {sMore}, 0
    s_cbranch_scc1 k2_fits
    ''')
    a.label('k2_tofb')
    a(f'''
    s_mov_b32 {sFb}, 1
    s_mov_b32 {sWin}, 8
    s_waitcnt lgkmcnt(0)
    s_barrier
    s_branch k2_round
    ''')
    a.label('k2_fits')
    for k in range(8):
        for h in range(2):
            a(f'''
            s_mov_b64 exec, s[{msk(k,h)}:{msk(k,h)+1}]
            s_cbranch_execz k2_s{k}
            ds_read_b32 v{sla(k,h)}, v{sla(k,h)} offset:{START & 0xffff}
            ''')
        a.label(f'k2_s{k}')
    a(f'''
    s_mov_b64 exec, -1
    s_lshl_b32 {sT0}, {sW}, 3
    v_mov_b32 v13, {REC}
    v_mov_b32 v14, {EL}
    v_readlane_b32 {sBase}, v12, {sT0}
    s_add_u32 {sT1}, {sT0}, 7
    v_readlane_b32 {sN}, v11, {sT1}
    ''')
    for r in range(4, -1, -1):
        a(f's_add_u32 {sT1}, {sT0}, {r}')
        a(f'v_readlane_b32 {sT2}, v10, {sT1}')
        if r == 4:
            a(f's_mov_b32 s{sCn}, {sT2}')
            a(f's_mov_b32 s{sCn+1}, 0')
        else:
            a(f's_lshl_b64 s[{sCn}:{sCn+1}], s[{sCn}:{sCn+1}], 12')
            a(f's_or_b32 s{sCn}, s{sCn}, {sT2}')
    a(f'''
    s_lshr_b32 {sT1}, {sBase}, 4
    s_sub_u32 {sN}, {sN}, {sT1}
    s_lshr_b32 {sP}, {sN}, 1
    s_waitcnt lgkmcnt(0)
    ''')
    for k in range(8):
        for h in range(2):
            e = ent(k, h)
            a(f'''
            s_mov_b64 exec, s[{msk(k,h)}:{msk(k,h)+1}]
            s_cbranch_execz k2_t{k}
            v_add_u32 v8, v{sla(k,h)}, v{rnk(k,h)}
            v_lshl_add_u32 v9, v8, 3, v13
            v_lshl_add_u32 v8, v8, 2, v14
            v_and_b32 v{e+2}, 0x3ffffff, v{e+2}
            ds_write2_b32 v9, v{e}, v{e+1} offset0:0 offset1:1
            ds_write_b32 v8, v{e+2}
            ''')
        a.label(f'k2_t{k}')
    a(f'''
    s_mov_b64 exec, -1
    s_lshl_b32 {sT0}, {sBase}, 3
    s_add_u32 {sT0}, {sT0}, {REC}
    v_lshrrev_b32 v2, 4, v{vLane}
    v_lshlrev_b32 v3, 5, v2
    v_add_u32 v{vSa}, {sT0}, v3
    s_lshl_b32 {sT1}, {sBase}, 2
    s_add_u32 {sT1}, {sT1}, {EL}
    v_lshrrev_b32 v3, 1, v{vLane}
    v_lshlrev_b32 v3, 2, v3
    v_add_u32 v{vEa}, {sT1}, v3
    s_sub_u32 {sPm3}, {sP}, 3
    s_min_u32 {sNst}, {sPm3}, {NSTASH}
    s_and_b32 {sStg}, {sP}, 3
    s_lshl_b32 {sStg}, {sStg}, 10
    s_lshl_b32 {sWrapInc}, {sN}, 7
    s_sub_u32 {sWrapInc}, 256, {sWrapInc}
    s_sub_u32 {sLook}, {sN}, 4
    s_mov_b32 {sSoff}, 0
    s_mov_b32 s{SX+2}, {XSZ}
    s_mov_b32 s{SA+2}, {ASZ}
    v_mov_b32 v{vYv}, 0
    ''')
    def set_ya():
        a(f'''
        s_lshl_b32 {sT0}, {sBase}, 3
        s_add_u32 {sT0}, {sT0}, {REC - 2}
        v_bfe_u32 v{vT}, v{vLane}, 3, 1
        v_bfe_u32 v{vT+1}, v{vLane}, 4, 1
        v_lshl_add_u32 v{vT}, v{vT}, 1, v{vT+1}      ; y
        v_and_b32 v{vT+1}, 7, v{vLane}
        v_lshrrev_b32 v{vT+2}, 5, v{vLane}
        v_lshl_add_u32 v{vT+1}, v{vT+2}, 3, v{vT+1}
        v_lshlrev_b32 v{vT+1}, 3, v{vT+1}
        v_lshl_add_u32 v{vT+1}, v{vT}, 1, v{vT+1}
        v_add_u32 v{vT+1}, {sT0}, v{vT+1}
        v_cmp_eq_u32 vcc, 0, v{vT}
        v_mov_b32 v{vT+2}, {ONE}
        v_mov_b32 v{vT+3}, 0x80
        v_cndmask_b32 v{vYa}, v{vT+1}, v{vT+2}, vcc
        v_cndmask_b32 v{vYs}, v{vT+3}, 0, vcc
        ''')
    set_ya()
    a('s_waitcnt lgkmcnt(0)')
    a('s_barrier')
    stamp(3)

    def src_reads(off):
        o = off // 4
        a(f'ds_read2_b32 v[{vSrc}:{vSrc+1}], v{vSa} offset0:{o+1} offset1:{o+3}')
        a(f'ds_read2_b32 v[{vSrc+2}:{vSrc+3}], v{vSa} offset0:{o+5} offset1:{o+7}')
    def src_addr():
        return [f'v_mad_u32_u16 v{vSrc+r}, v{vSrc+r}, {s512}, v{vXc+r} op_sel:[1,0,0,0]' for r in range(4)]
    def x_dma(slot, r):
        if 'dma' in EX: return []
        return [f's_add_u32 m0, {sXb}, {slot*4096 + r*1024}',
                's_nop 0',
                f'buffer_load_dwordx4 v{vSrc+r}, s[{SX}:{SX+3}], {sSoff} offen lds']
    def a_reads(par):
        for u in range(4):
            a(f'ds_read_b64_tr_b16 v[{vAf+2*u}:{vAf+2*u+1}], v{vA} offset:{par*512 + u*64}')
        a(f'ds_read_u16_d16_hi v{vYv}, v{vYa}')
        a(f'v_add_u32 v{vYa}, v{vYa}, v{vYs}')
    def aprep(buf):
        out = []
        if 'aprep' in EX: return out
        for T in range(2):
            for jj in range(4):
                t0 = vT + (jj & 1) * 2
                out.append(f'v_mul_f32_dpp v{t0}, v{vYv}, v{vAf+2*jj} row_newbcast:{8*T+2*jj} row_mask:0xf bank_mask:0xf')
                out.append(f'v_mul_f32_dpp v{t0+1}, v{vYv}, v{vAf+2*jj+1} row_newbcast:{8*T+2*jj+1} row_mask:0xf bank_mask:0xf')
                out.append(f'v_cvt_pk_bf16_f32 v{vAA+buf*8+T*4+jj}, v{t0}, v{t0+1}')
        return out
    def stash_store(lbl):
        a(f'''
        s_cmp_ge_u32 {sPn}, {sNst}
        s_cbranch_scc1 {lbl}
        s_lshl_b32 {sT0}, {sPn}, 2
        s_set_gpr_idx_on {sT0}, gpr_idx(DST)
        v_mov_b32 v{vSt}, v{vT}
        v_mov_b32 v{vSt+1}, v{vT+1}
        v_mov_b32 v{vSt+2}, v{vT+2}
        v_mov_b32 v{vSt+3}, v{vT+3}
        s_set_gpr_idx_off
        ''')
        a.label(lbl)
    cold = []
    def restore(lbl):
        a(f'''
        s_and_b32 {sT0}, {sPn}, 3
        s_lshl_b32 {sT0}, {sT0}, 10
        s_cmp_lt_u32 {sPn}, {sPm3}
        s_cselect_b32 {sT0}, {sStg}, {sT0}
        v_and_or_b32 v{vA}, {sT0}, v{vAmask}, v{vAbase}
        s_cbranch_scc0 {lbl}_done
        s_cmp_ge_u32 {sPn}, {sNst}
        s_cbranch_scc1 {lbl}_g
        s_lshl_b32 {sT0}, {sPn}, 2
        s_set_gpr_idx_on {sT0}, gpr_idx(SRC0)
        v_mov_b32 v{vT}, v{vSt}
        v_mov_b32 v{vT+1}, v{vSt+1}
        v_mov_b32 v{vT+2}, v{vSt+2}
        v_mov_b32 v{vT+3}, v{vSt+3}
        s_set_gpr_idx_off
        v_or_b32 v{vE}, {sStg}, v{vSl}
        ds_write_b128 v{vE}, {vr(vT,4)}
        ''')
        a.label(f'{lbl}_done')
        cold.append(f'''
        {lbl}_g:
        s_lshl_b32 {sT0}, {sPn}, 7
        v_add_u32 v{vE}, {sT0}, v{vEa}
        ds_read_b32 v{vE}, v{vE}
        s_add_u32 m0, {sAb}, {sStg}
        s_waitcnt lgkmcnt(0)
        v_and_or_b32 v{vE}, v{vXc}, 16, v{vE}
        buffer_load_dwordx4 v{vE}, s[{SA}:{SA+3}], 0 offen {ANT} lds
        s_waitcnt vmcnt(0)
        s_branch {lbl}_done
        ''')

    def step(ps, par, first):
        L = f'k2_p{ps}{"eo"[par]}{"cf"[first]}'
        a.label(L)
        if WD:
            a(f's_sub_u32 {sWD}, {sWD}, 1')
            a('s_cbranch_scc1 k2_wd')
        if ps == 2 and par == 1:
            restore(L + '_r')
        vm = 5 if ps == 1 else 4
        seg(3 if first else 2)
        a(f's_waitcnt vmcnt({vm})')
        seg(1)
        for ct in range(4):
            for u in range(2):
                if 'brd' in EX: continue
                a(f'ds_read_b64_tr_b16 v[{vB+ct*4+2*u}:{vB+ct*4+2*u+1}], v{vBa+ct} offset:{par*4096 + u*256}')
        later = 5
        if par == 1 and ps == 1:
            a(f'''
            s_and_b32 {sT0}, {sPn}, 3
            s_lshl_b32 {sT0}, {sT0}, 10
            v_and_or_b32 v{vA}, {sT0}, v{vAmask}, v{vAbase}
            v_or_b32 v{vE}, {sT0}, v{vSl}
            ds_read_b128 {vr(vT,4)}, v{vE}
            ''')
            later = 6
        a_reads(1 - par)
        mf = []
        for ct in range(4):
            for T in range(2):
                c = '0' if first else vr(acc(T, ct), 16)
                mf.append(f'v_mfma_f32_32x32x16_bf16 {vr(acc(T,ct),16)}, {vr(vAA+par*8+T*4,4)}, {vr(vB+ct*4,4)}, {c}' if 'mfma' not in EX else 's_nop 0')
        a(f's_waitcnt lgkmcnt({later})')
        for r in range(4):
            a(mf[r])
            for l in x_dma(par, r): a(l)
        nds = 2
        if par == 0:
            if ps == 1:
                a(f'''
                s_and_b32 {sT0}, {sPl}, 3
                s_lshl_b32 {sT0}, {sT0}, 10
                s_add_u32 {sT0}, {sT0}, {sAb}
                s_cmp_lt_u32 {sPl}, {sP}
                s_cselect_b32 s{SA+2}, s{SA+2}, 0
                s_cselect_b32 m0, {sT0}, {ZERO}
                s_add_u32 {sPl}, {sPl}, 1
                buffer_load_dwordx4 v{vE}, s[{SA}:{SA+3}], 0 offen {ANT} lds
                ''')
            src_reads(128)
        else:
            a(f's_cmp_eq_u32 {sLook}, 0')
            if ps == 1:
                a(f'''
                s_cselect_b32 {sInc}, {sWrapInc}, 0x100
                s_cselect_b32 {sSoff}, 0x100, {sSoff}
                s_cselect_b32 {sT0}, {sN}, 0
                s_add_u32 {sLook}, {sLook}, {sT0}
                s_sub_u32 {sLook}, {sLook}, 2
                v_add_u32 v{vSa}, {sInc}, v{vSa}
                ''')
            else:
                a(f'''
                s_cselect_b32 s{SX+2}, 0, s{SX+2}
                s_sub_u32 {sLook}, {sLook}, 2
                v_add_u32 v{vSa}, 0x100, v{vSa}
                ''')
            src_reads(0)
            if ps == 1:
                a(f'ds_read_b32 v{vE}, v{vEa}')
                a(f'v_add_u32 v{vEa}, 0x80, v{vEa}')
                nds = 3
        a(f's_waitcnt lgkmcnt({nds})')
        if par == 1 and ps == 1:
            stash_store(L + '_st')
        if par == 1:
            a(f's_add_u32 {sPn}, {sPn}, 1')
        ap = aprep(1 - par)
        for q in range(4):
            a(mf[4 + q])
            for l in ap[q*6:(q+1)*6]: a(l)
        a('s_waitcnt lgkmcnt(0)')
        for l in src_addr(): a(l)
        if par == 1 and ps == 1:
            a(f'v_and_or_b32 v{vE}, v{vXc}, 16, v{vE}')
        a(f's_sub_u32 {sRem}, {sRem}, 1')
        a(f's_cmp_eq_u32 {sRem}, 0')
        a(f's_cbranch_scc1 k2_epi{ps}{"eo"[par]}')

    def epilogue(ps, par):
        a.label(f'k2_epi{ps}{"eo"[par]}')
        seg(2)
        wb = [vB, None]
        def wreg(buf, cc, dh):
            if buf == 0:
                return vB + (cc * 2 + dh) * 4
            return (vAf + dh * 4) if cc == 0 else (vAA + par * 8 + dh * 4)
        vWa = vT
        a(f'''
        v_and_b32 v{vWa}, 31, v{vLane}
        v_lshrrev_b32 v{vWa+1}, 5, v{vLane}
        v_lshlrev_b32 v{vWa}, 4, v{vWa}
        v_lshl_add_u32 v{vWa}, v{vWa+1}, 10, v{vWa}
        v_add_u32 v{vWa}, {WT}, v{vWa}
        ''')
        if ps == 1:
            plan = [(0, [('P00', 1, 0, 0)]),
                    (2, [('P01_0', 1, 1, 0), ('P01_1', 1, 2, 0), ('P01_2', 1, 3, 0)]),
                    (3, [('P10_0', 1, 0, 1)]),
                    (1, [('P11', 1, 1, 1)]),
                    (4, [('PX2', -1, 2, 1), ('PX1', 1, 3, 1)])]
        else:
            plan = [(3, [('P10_1', 1, 0, 0), ('P10_2', 1, 0, 1)]),
                    (1, [('P11', 1, 2, 0), ('P11', 1, 3, 1)]),
                    (4, [('PX2', 1, 1, 0), ('PX0', -1, 3, 0), ('PX1', -1, 1, 1), ('PX0', 1, 2, 1)])]
        def wload(i):
            k = plan[i][0]
            for cc in range(2):
                for dh in range(2):
                    a(f'ds_read_b128 {vr(wreg(i & 1, cc, dh), 4)}, v{vWa} offset:{k*4096 + dh*2048 + cc*512}')
        wload(0)
        wload(1)
        sums = {}
        for i, (k, terms) in enumerate(plan):
            a(f's_waitcnt lgkmcnt({4 if i + 1 < len(plan) else 0})')
            if i == 0:
                a('s_nop 3')
            for (nm, sg, y, mh) in terms:
                for cc in range(2):
                    base = acc(y >> 1, mh * 2 + cc) + (y & 1) * 8
                    for dh in range(2):
                        for ii in range(4):
                            g = base + dh * 4 + ii
                            w = wreg(i & 1, cc, dh) + ii
                            if (nm, cc) not in sums:
                                sums[(nm, cc)] = g
                                if sg > 0: a(f'v_mul_f32 v{g}, v{g}, v{w}')
                                else: a(f'v_mul_f32 v{g}, -v{g}, v{w}')
                            else:
                                s = sums[(nm, cc)]
                                if 'epi' in EX: pass
                                elif sg > 0: a(f'v_fmac_f32 v{s}, v{g}, v{w}')
                                else: a(f'v_fma_f32 v{s}, -v{g}, v{w}, v{s}')
            if i + 2 < len(plan):
                wload(i + 2)
        names = []
        for (k, terms) in plan:
            for t in terms:
                if t[0] not in names: names.append(t[0])
        if ps == 2:
            a(f'''
            s_set_gpr_idx_on {sR4}, gpr_idx(SRC0)
            v_mov_b32 v{vB}, v{vP}
            v_mov_b32 v{vB+1}, v{vP+2}
            v_mov_b32 v{vB+2}, v{vP+3}
            s_set_gpr_idx_off
            ''')
        else:
            a('s_nop 1')
        for nm in names:
            a(f'v_permlane32_swap_b32 v{sums[(nm,0)]}, v{sums[(nm,1)]}')
        for nm in names:
            a(f'v_add_f32 v{sums[(nm,0)]}, v{sums[(nm,0)]}, v{sums[(nm,1)]}')
        S = lambda nm: f'v{sums[(nm,0)]}'
        if ps == 1:
            a(f'''
            v_cvt_pk_bf16_f32 v{vB}, {S('P00')}, {S('P11')}
            v_cvt_pk_bf16_f32 v{vB+1}, {S('P01_0')}, {S('P10_0')}
            v_cvt_pk_bf16_f32 v{vB+2}, {S('P01_1')}, {S('PX1')}
            v_cvt_pk_bf16_f32 v{vB+3}, {S('P01_2')}, {S('PX2')}
            s_set_gpr_idx_on {sR4}, gpr_idx(DST)
            v_mov_b32 v{vP}, v{vB}
            v_mov_b32 v{vP+1}, v{vB+1}
            v_mov_b32 v{vP+2}, v{vB+2}
            v_mov_b32 v{vP+3}, v{vB+3}
            s_set_gpr_idx_off
            ''')
        else:
            a(f'''
            v_and_b32 v{vB+4}, {sHi}, v{vB}
            v_and_b32 v{vB+5}, {sHi}, v{vB+1}
            v_and_b32 v{vB+6}, {sHi}, v{vB+2}
            v_add_f32 {S('P11')}, {S('P11')}, v{vB+4}
            v_add_f32 {S('PX1')}, {S('PX1')}, v{vB+5}
            v_add_f32 {S('PX2')}, {S('PX2')}, v{vB+6}
            v_lshlrev_b32 v{vB}, 16, v{vB}
            v_lshlrev_b32 v{vB+1}, 16, v{vB+1}
            v_lshlrev_b32 v{vB+2}, 16, v{vB+2}
            v_cvt_pk_bf16_f32 v{vB}, v{vB}, {S('P11')}
            v_cvt_pk_bf16_f32 v{vB+1}, v{vB+1}, {S('P10_1')}
            v_cvt_pk_bf16_f32 v{vB+2}, v{vB+2}, {S('P10_2')}
            v_cvt_pk_bf16_f32 v{vB+3}, {S('PX0')}, {S('PX1')}
            v_cvt_pk_bf16_f32 v{vB+4}, {S('PX2')}, {S('PX2')}
            s_set_gpr_idx_on {sR4}, gpr_idx(DST)
            v_mov_b32 v{vP}, v{vB}
            v_mov_b32 v{vP+2}, v{vB+1}
            v_mov_b32 v{vP+3}, v{vB+2}
            s_set_gpr_idx_off
            s_set_gpr_idx_on {sR2}, gpr_idx(DST)
            v_mov_b32 v{vSt}, v{vB+3}
            v_mov_b32 v{vSt+1}, v{vB+4}
            s_set_gpr_idx_off
            ''')
        a(f'''
        s_add_u32 {sR4}, {sR4}, 4
        s_add_u32 {sR2}, {sR2}, 2
        s_lshr_b64 s[{sCn2}:{sCn2+1}], s[{sCn2}:{sCn2+1}], 12
        s_and_b32 {sRem}, s{sCn2}, 0xfff
        ''')
        if par == 1:
            a(f's_cmp_eq_u32 {sR4}, 20')
            a(f's_cbranch_scc1 k2_p{ps}_end')
        a(f's_branch k2_p{ps}{"eo"[1-par]}f')

    def pass_init():
        a(f'''
        s_mov_b64 s[{sCn2}:{sCn2+1}], s[{sCn}:{sCn+1}]
        s_and_b32 {sRem}, s{sCn2}, 0xfff
        s_mov_b32 {sR4}, 0
        s_mov_b32 {sR2}, 0
        s_mov_b32 {sPn}, 0
        ''')

    pass_init()
    a(f'''
    ds_read_b32 v{vT}, v{vEa}
    ds_read_b32 v{vT+1}, v{vEa} offset:128
    ds_read_b32 v{vT+2}, v{vEa} offset:256
    ds_read_b32 v{vE}, v{vEa} offset:384
    ''')
    src_reads(0)
    a(f'''
    ds_read2_b32 v[{vB}:{vB+1}], v{vSa} offset0:33 offset1:35
    ds_read2_b32 v[{vB+2}:{vB+3}], v{vSa} offset0:37 offset1:39
    v_add_u32 v{vEa}, 0x200, v{vEa}
    v_add_u32 v{vSa}, 0x100, v{vSa}
    s_mov_b32 {sPl}, 3
    s_waitcnt lgkmcnt(4)
    ''')
    def adma0(p):
        a(f'''
        s_add_u32 m0, {sAb}, {p*1024}
        v_and_or_b32 v{vT+p}, v{vXc}, 16, v{vT+p}
        buffer_load_dwordx4 v{vT+p}, s[{SA}:{SA+3}], 0 offen {ANT} lds
        ''')
    adma0(0)
    adma0(1)
    a(f'v_and_or_b32 v{vE}, v{vXc}, 16, v{vE}')
    a('s_waitcnt lgkmcnt(0)')
    for l in src_addr(): a(l)
    for r in range(4):
        for l in x_dma(0, r): a(l)
    adma0(2)
    for r in range(4):
        a(f'v_mad_u32_u16 v{vB+r}, v{vB+r}, {s512}, v{vXc+r} op_sel:[1,0,0,0]')
    for r in range(4):
        a(f's_add_u32 m0, {sXb}, {4096 + r*1024}')
        a('s_nop 0')
        a(f'buffer_load_dwordx4 v{vB+r}, s[{SX}:{SX+3}], {sSoff} offen lds')
    src_reads(0)
    a(f'''
    v_mov_b32 v{vA}, v{vAbase}
    s_waitcnt vmcnt(10)
    ds_read_b128 {vr(vT,4)}, v{vSl}
    ''')
    a_reads(0)
    a('s_waitcnt lgkmcnt(0)')
    for l in src_addr(): a(l)
    stash_store('k2_p1_st0')
    a(f's_mov_b32 {sPn}, 1')
    for l in aprep(0): a(l)
    seg(-1)
    a('s_branch k2_p1ef')

    for ps in (1, 2):
        step(ps, 0, 0)
        step(ps, 1, 0)
        a(f's_branch k2_p{ps}ec')
        step(ps, 0, 1)
        a(f's_branch k2_p{ps}oc')
        step(ps, 1, 1)
        a(f's_branch k2_p{ps}ec')
        epilogue(ps, 0)
        epilogue(ps, 1)
        a.label(f'k2_p{ps}_end')
        stamp(3 + ps)
        if ps == 1:
            pass_init()
            set_ya()
            a(f'''
            s_add_u32 {sT0}, {sP}, 4
            s_lshl_b32 {sT0}, {sT0}, 7
            v_subrev_u32 v{vEa}, {sT0}, v{vEa}
            s_mov_b32 s{SA+2}, {ASZ}
            ''')
            restore('k2_p2_r0')
            a_reads(0)
            a('s_waitcnt lgkmcnt(0)')
            a(f's_mov_b32 {sPn}, 1')
            for l in aprep(0): a(l)
            a('s_branch k2_p2ef')

    FR = 128
    PB = 168
    D = vAA
    a(f'''
    s_and_b32 {sT0}, {sW}, 3
    s_lshl_b32 {sT0}, {sT0}, 10
    s_add_u32 {sT0}, {sT0}, {SIF}
    v_lshlrev_b32 v{vT}, 4, v{vLane}
    v_add_u32 v{vT}, {sT0}, v{vT}
    s_waitcnt vmcnt(0)
    ''')
    for f in range(10):
        a(f's_movk_i32 {sT1}, {f*4096}' if f * 4096 < 32768 else f's_mov_b32 {sT1}, {f*4096}')
        a(f'buffer_load_dwordx4 {vr(FR+4*f,4)}, v{vT}, s[{SWS}:{SWS+3}], {sT1} offen')
    a(f'''
    v_lshl_add_u32 v{vT+1}, v{vLane}, 2, {sXb}
    v_lshl_add_u32 v{vT+2}, v{vLane}, 1, {sXb}
    ''')
    for r in range(5):
        o = r * PSTR
        a(f'''
        ds_write_b32 v{vT+1}, v{vP+4*r} offset:{o}
        ds_write_b32 v{vT+1}, v{vP+4*r+1} offset:{o+256}
        ds_write_b32 v{vT+1}, v{vP+4*r+2} offset:{o+640}
        ds_write_b32 v{vT+1}, v{vP+4*r+3} offset:{o+1024}
        ds_write_b16 v{vT+2}, v{vSt+2*r} offset:{o+512}
        ds_write_b16_d16_hi v{vT+2}, v{vSt+2*r} offset:{o+896}
        ds_write_b16 v{vT+2}, v{vSt+2*r+1} offset:{o+1280}
        ''')
    a(f'''
    s_lshr_b32 {sNt}, {sW}, 2
    s_mov_b32 {sUn}, 0
    s_waitcnt lgkmcnt(0)
    s_barrier
    ''')
    stamp(6)
    a.label('k2_unit')
    vn, vq, vpa, vo = vB, vB + 1, vB + 2, vB + 3
    a(f'''
    s_lshl_b32 {sT0}, {sNt}, 4
    v_and_b32 v{vn}, 15, v{vLane}
    v_add_u32 v{vn}, {sT0}, v{vn}
    v_cmp_gt_u32 s[{MASK}:{MASK+1}], 40, v{vn}
    v_min_u32 v{vn}, 39, v{vn}
    v_mul_u32_u24 v{vq}, 52, v{vn}
    v_lshrrev_b32 v{vq}, 8, v{vq}
    v_mad_i32_i24 v{vpa}, v{vq}, -5, v{vn}
    v_mul_u32_u24 v{vpa}, {PSTR}, v{vpa}
    v_lshl_add_u32 v{vpa}, v{vq}, 13, v{vpa}
    v_lshrrev_b32 v{vq}, 4, v{vLane}
    v_lshl_add_u32 v{vpa}, v{vq}, 4, v{vpa}
    ''')
    offs = [f * 64 for f in range(4)] + [256 + j * 384 + f * 64 for j in range(3) for f in range(6)]
    for i, o in enumerate(offs[:10]):
        a(f'ds_read_b128 {vr(PB+4*i,4)}, v{vpa} offset:{o}')
    a(f'''
    s_mul_i32 {sT0}, s2, 40
    v_add_u32 v{vo}, {sT0}, v{vn}
    v_lshlrev_b32 v{vo}, 9, v{vo}
    v_lshl_add_u32 v{vo}, v{vq}, 3, v{vo}
    s_and_b32 {sT0}, {sW}, 3
    s_lshl_b32 {sT0}, {sT0}, 5
    v_add_u32 v{vo}, {sT0}, v{vo}
    s_waitcnt vmcnt(0) lgkmcnt(0)
    ''')
    for i, o in enumerate(offs[10:]):
        a(f'ds_read_b128 {vr(PB+40+4*i,4)}, v{vpa} offset:{o}')
    def mm(i, f, d, firstf):
        c = '0' if firstf else vr(d, 4)
        a(f'v_mfma_f32_16x16x32_bf16 {vr(d,4)}, {vr(FR+4*f,4)}, {vr(PB+4*i,4)}, {c}')
    for f in range(6):
        if f < 4: mm(f, f, D, f == 0)
        mm(4 + f, 4 + f, D + 4, f == 0)
    a('s_waitcnt lgkmcnt(0)')
    for f in range(6):
        mm(10 + f, 4 + f, D + 8, f == 0)
        mm(16 + f, 4 + f, D + 12, f == 0)
    a('s_nop 7')
    a(f'''
    s_cmp_eq_u32 {sFb}, 0
    s_cbranch_scc1 k2_store
    s_lshl_b32 {sT0}, s2, 3
    s_add_u32 {sT0}, {sT0}, {sW}
    s_lshl_b32 {sT0}, {sT0}, 1
    s_add_u32 {sT0}, {sT0}, {sUn}
    s_lshl_b32 {sT0}, {sT0}, 12
    s_add_u32 {sT0}, {sT0}, {ACC}
    v_lshlrev_b32 v{vq}, 4, v{vLane}
    v_add_u32 v{vq}, {sT0}, v{vq}
    s_cmp_lg_u32 {sFirst}, 0
    s_cbranch_scc1 k2_noacc
    ''')
    for i in range(4):
        a(f'buffer_load_dwordx4 {vr(PB+4*i,4)}, v{vq}, s[{SWS}:{SWS+3}], 0 offen offset:{i*1024} sc0 sc1')
    a('s_waitcnt vmcnt(0)')
    for i in range(16):
        a(f'v_add_f32 v{D+i}, v{D+i}, v{PB+i}')
    a.label('k2_noacc')
    a(f'''
    s_cmp_eq_u32 {sMore}, 0
    s_cbranch_scc1 k2_store
    ''')
    for i in range(4):
        a(f'buffer_store_dwordx4 {vr(D+4*i,4)}, v{vq}, s[{SWS}:{SWS+3}], 0 offen offset:{i*1024} sc0 sc1')
    a('s_waitcnt vmcnt(0)')
    a('s_branch k2_next')
    a.label('k2_store')
    g = PB
    for i in range(4):
        a(f'v_mul_f32 v{g+i}, 0xbfb8aa3b, v{D+i}')
    for i in range(4):
        a(f'v_exp_f32 v{g+i}, v{g+i}')
    a('s_nop 0')
    for i in range(4):
        a(f'v_add_f32 v{g+i}, 1.0, v{g+i}')
    for i in range(4):
        a(f'v_rcp_f32 v{g+i}, v{g+i}')
    a('s_nop 0')
    for j in range(3):
        for i in range(4):
            a(f'v_mul_f32 v{D+4+4*j+i}, v{D+4+4*j+i}, v{g+i}')
    for p in range(4):
        a(f'v_cvt_pk_bf16_f32 v{g+4+2*p}, v{D+4*p}, v{D+4*p+1}')
        a(f'v_cvt_pk_bf16_f32 v{g+5+2*p}, v{D+4*p+2}, v{D+4*p+3}')
    a(f's_mov_b64 exec, s[{MASK}:{MASK+1}]')
    for p in range(4):
        a(f'buffer_store_dwordx2 {vr(g+4+2*p,2)}, v{vo}, s[{SO}:{SO+3}], 0 offen offset:{p*128}')
    a('s_mov_b64 exec, -1')
    a.label('k2_next')
    a(f'''
    s_add_u32 {sNt}, {sNt}, 2
    s_add_u32 {sUn}, {sUn}, 1
    s_cmp_lt_u32 {sNt}, 3
    s_cbranch_scc1 k2_unit
    s_cmp_eq_u32 {sFb}, 0
    s_cbranch_scc1 k2_end
    s_cmp_eq_u32 {sMore}, 0
    s_cbranch_scc1 k2_end
    s_add_u32 {sLo}, {sLo}, {sWin}
    s_mov_b32 {sFirst}, 0
    s_and_b32 {sT0}, s2, 7
    s_lshl_b32 {sT0}, {sT0}, 5
    s_lshr_b32 {sT1}, s2, 3
    s_add_u32 {sT0}, {sT0}, {sT1}
    s_lshl_b32 {sT0}, {sT0}, 2
    s_add_u32 {sT0}, {sT0}, {TAB}
    s_lshl_b32 {sT1}, {sW}, 15
    s_add_u32 {sT0}, {sT0}, {sT1}
    v_and_b32 v{vT}, 31, v0
    v_lshlrev_b32 v{vT}, 10, v{vT}
    v_add_u32 v{vT}, {sT0}, v{vT}
    buffer_load_dword v{vTab}, v{vT}, s[{SWS}:{SWS+3}], 0 offen
    s_waitcnt lgkmcnt(0)
    s_barrier
    s_branch k2_round
    ''')
    a.label('k2_end')
    if PROF:
        a('s_cmp_ge_u32 s2, 250')
        a('s_cbranch_scc1 k2_end2')
        a('s_waitcnt vmcnt(0)')
        stamp(7)
        stamp(9, True)
        a(f's_mov_b32 s100, {sN}')
        a(f's_lshl_b32 {sT0}, s2, 3')
        a(f's_add_u32 {sT0}, {sT0}, {sW}')
        a(f's_lshl_b32 {sT0}, {sT0}, 6')
        a(f's_add_u32 {sT0}, {sT0}, 0xA000000')
        a(f'v_mov_b32 v2, {sT0}')
        for i in range(11):
            a(f'v_mov_b32 v3, s{90+i}')
            a(f'buffer_store_dword v3, v2, s[{SWS}:{SWS+3}], 0 offen offset:{4*i}')
        a.label('k2_end2')
    a('s_endpgm')
    if WD:
        a.label('k2_wd')
        a('s_waitcnt vmcnt(0) lgkmcnt(0)')
        a('s_endpgm')
    for c in cold:
        for l in c.strip().split('\n'):
            l = l.strip()
            if l.endswith(':'): a.label(l[:-1])
            else: a(l)
```

```python
import sys
from asmlib import Asm, check

NAME = 'gather_scatter__tensor_product_equiv_equiformer__graph'
HDR = open('cdna_kernels/%s.s.ref' % NAME).read().split('; Override')[0]

ENT_STRIDE = 30080
TAB = 0x800000
WTG = 0x850000
SIF = 0x860000
ACC = 0x900000
XR = 0
AS = 65536
WT = 98304
REC = 118784
CAP = 3584
EL = REC + CAP * 8
ZERO = EL + CAP * 4
HIST = ZERO + 1024
FLAG = HIST + 256
START = HIST + 512
ONE = ZERO + 2032
LDS2 = 163840
assert ZERO + 2048 == LDS2
PSTR = 1424
NSTASH = 10

def srd(a, s, koff, size):
    a(f's_load_dwordx2 s[{s}:{s+1}], s[0:1], {koff}')
    a(f's_mov_b32 s{s+2}, {size}')
    a(f's_mov_b32 s{s+3}, 0x00020000')

def wave_scan(a, v):
    for sh in (1, 2, 4, 8):
        a('s_nop 1')
        a(f'v_add_u32_dpp {v}, {v}, {v} row_shr:{sh} row_mask:0xf bank_mask:0xf')
    a('s_nop 1')
    a(f'v_add_u32_dpp {v}, {v}, {v} row_bcast:15 row_mask:0xa bank_mask:0xf')
    a('s_nop 1')
    a(f'v_add_u32_dpp {v}, {v}, {v} row_bcast:31 row_mask:0xc bank_mask:0xf')

def gen_k1(a):
    CNT = 30720
    ST = 31744
    a.label('k1_kernel')
    a('s_cmp_ge_u32 s2, 262')
    a('s_cbranch_scc1 k1_end')
    srd(a, 16, 88, 0x10000000)
    a('s_cmp_ge_u32 s2, 256')
    a('s_cbranch_scc1 k1_w')
    srd(a, 4, 32, 2560000)
    srd(a, 8, 24, 2560000)
    srd(a, 12, 8, 3840000)
    a(f'''
    v_lshlrev_b32 v1, 2, v0
    v_mov_b32 v2, 0
    ds_write_b32 v1, v2 offset:{CNT}
    s_mul_i32 s20, s2, 10000
    s_mul_i32 s21, s2, 15000
    v_lshlrev_b32 v2, 4, v0
    v_add_u32 v2, s20, v2
    v_mul_u32_u24 v3, 24, v0
    v_add_u32 v3, s21, v3
    v_cmp_gt_u32 vcc, 625, v0
    s_and_saveexec_b64 s[22:23], vcc
    s_waitcnt lgkmcnt(0)
    buffer_load_dwordx4 v[4:7], v2, s[4:7], 0 offen
    buffer_load_dwordx4 v[8:11], v2, s[8:11], 0 offen
    buffer_load_dwordx4 v[12:15], v3, s[12:15], 0 offen
    buffer_load_dwordx2 v[16:17], v3, s[12:15], 0 offen offset:16
    v_lshlrev_b32 v18, 3, v2
    v_mov_b32 v19, 1
    s_mov_b32 s24, 0x05040100
    s_mov_b32 s25, 0x05040302
    s_barrier
    s_waitcnt vmcnt(3)
    ''')
    for j in range(4):
        d = f'v{4+j}'
        a(f'''
        v_mul_u32_u24 v32, 0xcccd, {d}
        v_lshrrev_b32 v32, 18, v32
        v_mad_i32_i24 v33, v32, -5, {d}
        v_and_b32 v34, 7, v32
        v_lshl_or_b32 v33, v34, 3, v33
        v_bfe_u32 v34, v32, 3, 3
        v_lshrrev_b32 v35, 6, v32
        v_lshlrev_b32 v35, 2, v35
        v_lshl_or_b32 v{20+j}, v34, 7, v35
        ds_add_rtn_u32 v{28+j}, v{20+j}, v19 offset:{CNT}
        v_add_u32 v34, {32*j}, v18
        v_lshl_or_b32 v{24+j}, v33, 26, v34
        ''')
    a(f'''
    s_waitcnt vmcnt(0)
    v_mov_b32 v36, v12
    v_perm_b32 v40, v8, v13, s24
    v_alignbit_b32 v37, v14, v13, 16
    v_perm_b32 v41, v9, v14, s25
    v_mov_b32 v38, v15
    v_perm_b32 v42, v10, v16, s24
    v_alignbit_b32 v39, v17, v16, 16
    v_perm_b32 v43, v11, v17, s25
    s_mov_b64 s[26:27], exec
    s_mov_b64 exec, -1
    v_and_b32 v1, 63, v0
    v_lshlrev_b32 v1, 4, v1
    s_waitcnt lgkmcnt(0)
    s_barrier
    ds_read_b128 v[4:7], v1 offset:{CNT}
    s_waitcnt lgkmcnt(0)
    v_add_u32 v8, v4, v5
    v_add_u32 v9, v6, v7
    v_add_u32 v8, v8, v9
    v_mov_b32 v9, v8
    ''')
    wave_scan(a, 'v9')
    a(f'''
    v_sub_u32 v12, v9, v8
    v_add_u32 v13, v12, v4
    v_add_u32 v14, v13, v5
    v_add_u32 v15, v14, v6
    ds_write_b128 v1, v[12:15] offset:{ST}
    v_cmp_gt_u32 vcc, 64, v0
    s_and_saveexec_b64 s[28:29], vcc
    s_cbranch_execz k1_notab
    v_lshl_or_b32 v4, v4, 16, v12
    v_lshl_or_b32 v5, v5, 16, v13
    v_lshl_or_b32 v6, v6, 16, v14
    v_lshl_or_b32 v7, v7, 16, v15
    s_lshl_b32 s20, s2, 10
    s_add_u32 s20, s20, {TAB}
    v_add_u32 v8, s20, v1
    buffer_store_dwordx4 v[4:7], v8, s[16:19], 0 offen
    ''')
    a.label('k1_notab')
    a('s_mov_b64 exec, s[26:27]')
    for j in range(4):
        a(f'ds_read_b32 v{44+j}, v{20+j} offset:{ST}')
    for j in range(4):
        a(f'''
        s_waitcnt lgkmcnt({3-j if j == 0 else 2*j + 3 - j})
        v_add_u32 v{44+j}, v{44+j}, v{28+j}
        v_mul_u32_u24 v{44+j}, 12, v{44+j}
        ds_write2_b32 v{44+j}, v{36+j}, v{40+j} offset0:0 offset1:1
        ds_write_b32 v{44+j}, v{24+j} offset:8
        ''')
    a(f'''
    s_mov_b64 exec, -1
    v_lshlrev_b32 v1, 4, v0
    s_mul_i32 s20, s2, {ENT_STRIDE}
    v_add_u32 v2, s20, v1
    s_waitcnt lgkmcnt(0)
    s_barrier
    ds_read_b128 v[4:7], v1
    ds_read_b128 v[8:11], v1 offset:10240
    ds_read_b128 v[12:15], v1 offset:20480
    v_add_u32 v3, 10240, v2
    v_add_u32 v16, 20480, v2
    v_cmp_gt_u32 vcc, 595, v0
    s_waitcnt lgkmcnt(2)
    buffer_store_dwordx4 v[4:7], v2, s[16:19], 0 offen
    s_waitcnt lgkmcnt(1)
    buffer_store_dwordx4 v[8:11], v3, s[16:19], 0 offen
    s_and_b64 exec, exec, vcc
    s_waitcnt lgkmcnt(0)
    buffer_store_dwordx4 v[12:15], v16, s[16:19], 0 offen
    s_endpgm
    ''')
    a.label('k1_w')
    a('s_cmp_ge_u32 s2, 260')
    a('s_cbranch_scc1 k1_wt')
    srd(a, 4, 48, 16384)
    srd(a, 8, 56, 24576)
    a(f'''
    v_lshrrev_b32 v1, 6, v0
    s_nop 0
    v_readfirstlane_b32 s20, v1
    s_sub_u32 s21, s2, 256
    s_mul_i32 s21, s21, 10
    s_add_u32 s20, s20, s21
    s_lshr_b32 s21, s20, 2
    s_and_b32 s22, s20, 3
    s_waitcnt lgkmcnt(0)
    s_cmp_lt_u32 s21, 4
    s_cselect_b32 s12, s4, s8
    s_cselect_b32 s13, s5, s9
    s_cselect_b32 s14, s6, s10
    s_mov_b32 s15, 0x00020000
    s_cselect_b32 s23, 0, 4
    s_sub_u32 s21, s21, s23
    s_cmp_lt_u32 s21, 4
    s_mov_b32 s24, 0x80
    s_cmov_b32 s24, 0x2000
    s_mov_b32 s25, 0x100
    s_cmov_b32 s25, 0x80
    s_cselect_b32 s26, 6, 7
    v_and_b32 v1, 63, v0
    v_lshrrev_b32 v2, 4, v1
    v_lshlrev_b32 v2, 3, v2
    s_lshl_b32 s27, s21, 5
    v_add_u32 v2, s27, v2
    v_lshlrev_b32 v2, s26, v2
    v_and_b32 v3, 15, v1
    s_lshl_b32 s27, s22, 4
    v_add_u32 v3, s27, v3
    v_lshl_add_u32 v4, v3, 1, v2
    v_add_u32 v5, s25, v4
    v_add_u32 v6, s25, v5
    v_add_u32 v7, s25, v6
    v_add_u32 v20, s24, v4
    v_add_u32 v21, s24, v5
    v_add_u32 v22, s24, v6
    v_add_u32 v23, s24, v7
    ''')
    for i in range(4):
        a(f'buffer_load_ushort v{8+2*i}, v{4+i}, s[12:15], 0 offen')
        a(f'buffer_load_ushort v{9+2*i}, v{20+i}, s[12:15], 0 offen')
    a(f'''
    s_lshl_b32 s27, s20, 10
    s_add_u32 s27, s27, {SIF}
    v_lshlrev_b32 v1, 4, v1
    v_add_u32 v1, s27, v1
    s_waitcnt vmcnt(0)
    v_lshl_or_b32 v16, v9, 16, v8
    v_lshl_or_b32 v17, v11, 16, v10
    v_lshl_or_b32 v18, v13, 16, v12
    v_lshl_or_b32 v19, v15, 16, v14
    buffer_store_dwordx4 v[16:19], v1, s[16:19], 0 offen
    s_endpgm
    ''')
    a.label('k1_wt')
    srd(a, 4, 40, 10240)
    a(f'''
    s_sub_u32 s21, s2, 260
    s_mul_i32 s21, s21, 640
    v_add_u32 v1, s21, v0
    v_and_b32 v2, 63, v1
    v_bfe_u32 v3, v1, 6, 2
    v_lshrrev_b32 v4, 8, v1
    v_lshl_add_u32 v2, v4, 6, v2
    v_lshlrev_b32 v2, 1, v2
    v_mul_u32_u24 v3, 2560, v3
    v_add_u32 v2, v2, v3
    s_waitcnt lgkmcnt(0)
    buffer_load_ushort v4, v2, s[4:7], 0 offen
    buffer_load_ushort v5, v2, s[4:7], 0 offen offset:640
    buffer_load_ushort v6, v2, s[4:7], 0 offen offset:1280
    buffer_load_ushort v7, v2, s[4:7], 0 offen offset:1920
    v_lshlrev_b32 v1, 4, v1
    v_add_u32 v1, {WTG}, v1
    s_waitcnt vmcnt(0)
    v_lshlrev_b32 v4, 16, v4
    v_lshlrev_b32 v5, 16, v5
    v_lshlrev_b32 v6, 16, v6
    v_lshlrev_b32 v7, 16, v7
    buffer_store_dwordx4 v[4:7], v1, s[16:19], 0 offen
    ''')
    a.label('k1_end')
    a('s_endpgm')

from gen_k2 import gen_k2

def desc(name, vgpr, sgpr=102):
    return f'''.section .rodata,"a"
.p2align 6
.amdhsa_kernel {name}
  .amdhsa_next_free_vgpr {vgpr}
  .amdhsa_next_free_sgpr {sgpr}
  .amdhsa_accum_offset {vgpr}
  .amdhsa_group_segment_fixed_size 0
  .amdhsa_kernarg_size 96
  .amdhsa_user_sgpr_count 2
  .amdhsa_user_sgpr_kernarg_segment_ptr 1
  .amdhsa_system_sgpr_workgroup_id_x 1
.end_amdhsa_kernel
'''

def main(out):
    a1 = Asm(); gen_k1(a1)
    a2 = Asm(); gen_k2(a2, globals())
    for nm, a in (('k1', a1), ('k2', a2)):
        for p in check(a.lines):
            print('HAZARD', nm, p)
    s = HDR
    s += '; @launch kernel=k1_kernel grid=(262,1,1) block=(640,1,1) lds=33280\n'
    s += f'; @launch kernel=k2_kernel grid=(250,1,1) block=(512,1,1) lds={LDS2}\n'
    s += '.amdgcn_target "amdgcn-amd-amdhsa--gfx950"\n.text\n'
    for nm, a in (('k1_kernel', a1), ('k2_kernel', a2)):
        s += f'.globl {nm}\n.p2align 8\n.type {nm},@function\n' + a.text()
    s += desc('k1_kernel', 48)
    s += desc('k2_kernel', 256)
    open(out, 'w').write(s)

if __name__ == '__main__':
    main(sys.argv[1] if len(sys.argv) > 1 else 'cdna_kernels/%s.s' % NAME)
```

```python
import sys
from asmlib import Asm, check

NAME = 'gather_scatter__tensor_product_equiv_equiformer__graph'
HDR = open('cdna_kernels/%s.s.ref' % NAME).read().split('; Override')[0]

ENT_STRIDE = 30080
TAB = 0x800000
WTG = 0x850000
SIF = 0x860000
ACC = 0x900000
XR = 0
AS = 65536
WT = 98304
REC = 118784
CAP = 3584
EL = REC + CAP * 8
ZERO = EL + CAP * 4
HIST = ZERO + 1024
FLAG = HIST + 256
START = HIST + 512
ONE = ZERO + 2032
LDS2 = 163840
assert ZERO + 2048 == LDS2
PSTR = 1424
NSTASH = 10

def srd(a, s, koff, size):
    a(f's_load_dwordx2 s[{s}:{s+1}], s[0:1], {koff}')
    a(f's_mov_b32 s{s+2}, {size}')
    a(f's_mov_b32 s{s+3}, 0x00020000')

def wave_scan(a, v):
    for sh in (1, 2, 4, 8):
        a('s_nop 1')
        a(f'v_add_u32_dpp {v}, {v}, {v} row_shr:{sh} row_mask:0xf bank_mask:0xf')
    a('s_nop 1')
    a(f'v_add_u32_dpp {v}, {v}, {v} row_bcast:15 row_mask:0xa bank_mask:0xf')
    a('s_nop 1')
    a(f'v_add_u32_dpp {v}, {v}, {v} row_bcast:31 row_mask:0xc bank_mask:0xf')

def gen_k1(a):
    CNT = 30720
    ST = 31744
    a.label('k1_kernel')
    a('s_cmp_ge_u32 s2, 262')
    a('s_cbranch_scc1 k1_end')
    srd(a, 16, 88, 0x10000000)
    a('s_cmp_ge_u32 s2, 256')
    a('s_cbranch_scc1 k1_w')
    srd(a, 4, 32, 2560000)
    srd(a, 8, 24, 2560000)
    srd(a, 12, 8, 3840000)
    srd(a, 32, 0, 5120000)
    import os
    PFM = int(os.environ.get('PFX', '1'))
    PFX = '''
    s_lshr_b32 s30, s2, 3
    s_mul_i32 s30, s30, 625
    v_add_u32 v48, s30, v0
    v_lshrrev_b32 v49, 1, v48
    v_and_b32 v48, 1, v48
    v_lshlrev_b32 v48, 7, v48
    v_lshl_add_u32 v48, v49, 9, v48
    buffer_load_dword v49, v48, s[32:35], 0 offen
    ''' if PFM else ''
    a(f'''
    v_lshlrev_b32 v1, 2, v0
    v_mov_b32 v2, 0
    ds_write_b32 v1, v2 offset:{CNT}
    s_mul_i32 s20, s2, 10000
    s_mul_i32 s21, s2, 15000
    v_lshlrev_b32 v2, 4, v0
    v_add_u32 v2, s20, v2
    v_mul_u32_u24 v3, 24, v0
    v_add_u32 v3, s21, v3
    v_cmp_gt_u32 vcc, 625, v0
    s_and_saveexec_b64 s[22:23], vcc
    s_waitcnt lgkmcnt(0)
    buffer_load_dwordx4 v[4:7], v2, s[4:7], 0 offen
    buffer_load_dwordx4 v[8:11], v2, s[8:11], 0 offen
    buffer_load_dwordx4 v[12:15], v3, s[12:15], 0 offen
    buffer_load_dwordx2 v[16:17], v3, s[12:15], 0 offen offset:16
    {PFX}
    v_lshlrev_b32 v18, 3, v2
    v_mov_b32 v19, 1
    s_mov_b32 s24, 0x05040100
    s_mov_b32 s25, 0x05040302
    s_barrier
    s_waitcnt vmcnt({3+PFM})
    ''')
    for j in range(4):
        d = f'v{4+j}'
        a(f'''
        v_mul_u32_u24 v32, 0xcccd, {d}
        v_lshrrev_b32 v32, 18, v32
        v_mad_i32_i24 v33, v32, -5, {d}
        v_and_b32 v34, 7, v32
        v_lshl_or_b32 v33, v34, 3, v33
        v_bfe_u32 v34, v32, 3, 3
        v_lshrrev_b32 v35, 6, v32
        v_lshlrev_b32 v35, 2, v35
        v_lshl_or_b32 v{20+j}, v34, 7, v35
        ds_add_rtn_u32 v{28+j}, v{20+j}, v19 offset:{CNT}
        v_add_u32 v34, {32*j}, v18
        v_lshl_or_b32 v{24+j}, v33, 26, v34
        ''')
    a(f'''
    s_waitcnt vmcnt({PFM})
    v_mov_b32 v36, v12
    v_perm_b32 v40, v8, v13, s24
    v_alignbit_b32 v37, v14, v13, 16
    v_perm_b32 v41, v9, v14, s25
    v_mov_b32 v38, v15
    v_perm_b32 v42, v10, v16, s24
    v_alignbit_b32 v39, v17, v16, 16
    v_perm_b32 v43, v11, v17, s25
    s_mov_b64 s[26:27], exec
    s_mov_b64 exec, -1
    v_and_b32 v1, 63, v0
    v_lshlrev_b32 v1, 4, v1
    s_waitcnt lgkmcnt(0)
    s_barrier
    ds_read_b128 v[4:7], v1 offset:{CNT}
    s_waitcnt lgkmcnt(0)
    v_add_u32 v8, v4, v5
    v_add_u32 v9, v6, v7
    v_add_u32 v8, v8, v9
    v_mov_b32 v9, v8
    ''')
    wave_scan(a, 'v9')
    a(f'''
    v_sub_u32 v12, v9, v8
    v_add_u32 v13, v12, v4
    v_add_u32 v14, v13, v5
    v_add_u32 v15, v14, v6
    ds_write_b128 v1, v[12:15] offset:{ST}
    v_cmp_gt_u32 vcc, 64, v0
    s_and_saveexec_b64 s[28:29], vcc
    s_cbranch_execz k1_notab
    v_lshl_or_b32 v4, v4, 16, v12
    v_lshl_or_b32 v5, v5, 16, v13
    v_lshl_or_b32 v6, v6, 16, v14
    v_lshl_or_b32 v7, v7, 16, v15
    s_lshl_b32 s20, s2, 10
    s_add_u32 s20, s20, {TAB}
    v_add_u32 v8, s20, v1
    buffer_store_dwordx4 v[4:7], v8, s[16:19], 0 offen
    ''')
    a.label('k1_notab')
    a('s_mov_b64 exec, s[26:27]')
    for j in range(4):
        a(f'ds_read_b32 v{44+j}, v{20+j} offset:{ST}')
    for j in range(4):
        a(f'''
        s_waitcnt lgkmcnt({3-j if j == 0 else 2*j + 3 - j})
        v_add_u32 v{44+j}, v{44+j}, v{28+j}
        v_mul_u32_u24 v{44+j}, 12, v{44+j}
        ds_write2_b32 v{44+j}, v{36+j}, v{40+j} offset0:0 offset1:1
        ds_write_b32 v{44+j}, v{24+j} offset:8
        ''')
    a(f'''
    s_mov_b64 exec, -1
    v_lshlrev_b32 v1, 4, v0
    s_mul_i32 s20, s2, {ENT_STRIDE}
    v_add_u32 v2, s20, v1
    s_waitcnt lgkmcnt(0)
    s_barrier
    ds_read_b128 v[4:7], v1
    ds_read_b128 v[8:11], v1 offset:10240
    ds_read_b128 v[12:15], v1 offset:20480
    v_add_u32 v3, 10240, v2
    v_add_u32 v16, 20480, v2
    v_cmp_gt_u32 vcc, 595, v0
    s_waitcnt vmcnt(0) lgkmcnt(2)
    buffer_store_dwordx4 v[4:7], v2, s[16:19], 0 offen
    s_waitcnt lgkmcnt(1)
    buffer_store_dwordx4 v[8:11], v3, s[16:19], 0 offen
    s_and_b64 exec, exec, vcc
    s_waitcnt lgkmcnt(0)
    buffer_store_dwordx4 v[12:15], v16, s[16:19], 0 offen
    s_endpgm
    ''')
    a.label('k1_w')
    a('s_cmp_ge_u32 s2, 260')
    a('s_cbranch_scc1 k1_wt')
    srd(a, 4, 48, 16384)
    srd(a, 8, 56, 24576)
    a(f'''
    v_lshrrev_b32 v1, 6, v0
    s_nop 0
    v_readfirstlane_b32 s20, v1
    s_sub_u32 s21, s2, 256
    s_mul_i32 s21, s21, 10
    s_add_u32 s20, s20, s21
    s_lshr_b32 s21, s20, 2
    s_and_b32 s22, s20, 3
    s_waitcnt lgkmcnt(0)
    s_cmp_lt_u32 s21, 4
    s_cselect_b32 s12, s4, s8
    s_cselect_b32 s13, s5, s9
    s_cselect_b32 s14, s6, s10
    s_mov_b32 s15, 0x00020000
    s_cselect_b32 s23, 0, 4
    s_sub_u32 s21, s21, s23
    s_cmp_lt_u32 s21, 4
    s_mov_b32 s24, 0x80
    s_cmov_b32 s24, 0x2000
    s_mov_b32 s25, 0x100
    s_cmov_b32 s25, 0x80
    s_cselect_b32 s26, 6, 7
    v_and_b32 v1, 63, v0
    v_lshrrev_b32 v2, 4, v1
    v_lshlrev_b32 v2, 3, v2
    s_lshl_b32 s27, s21, 5
    v_add_u32 v2, s27, v2
    v_lshlrev_b32 v2, s26, v2
    v_and_b32 v3, 15, v1
    s_lshl_b32 s27, s22, 4
    v_add_u32 v3, s27, v3
    v_lshl_add_u32 v4, v3, 1, v2
    v_add_u32 v5, s25, v4
    v_add_u32 v6, s25, v5
    v_add_u32 v7, s25, v6
    v_add_u32 v20, s24, v4
    v_add_u32 v21, s24, v5
    v_add_u32 v22, s24, v6
    v_add_u32 v23, s24, v7
    ''')
    for i in range(4):
        a(f'buffer_load_ushort v{8+2*i}, v{4+i}, s[12:15], 0 offen')
        a(f'buffer_load_ushort v{9+2*i}, v{20+i}, s[12:15], 0 offen')
    a(f'''
    s_lshl_b32 s27, s20, 10
    s_add_u32 s27, s27, {SIF}
    v_lshlrev_b32 v1, 4, v1
    v_add_u32 v1, s27, v1
    s_waitcnt vmcnt(0)
    v_lshl_or_b32 v16, v9, 16, v8
    v_lshl_or_b32 v17, v11, 16, v10
    v_lshl_or_b32 v18, v13, 16, v12
    v_lshl_or_b32 v19, v15, 16, v14
    buffer_store_dwordx4 v[16:19], v1, s[16:19], 0 offen
    s_endpgm
    ''')
    a.label('k1_wt')
    srd(a, 4, 40, 10240)
    a(f'''
    s_sub_u32 s21, s2, 260
    s_mul_i32 s21, s21, 640
    v_add_u32 v1, s21, v0
    v_and_b32 v2, 63, v1
    v_bfe_u32 v3, v1, 6, 2
    v_lshrrev_b32 v4, 8, v1
    v_lshl_add_u32 v2, v4, 6, v2
    v_lshlrev_b32 v2, 1, v2
    v_mul_u32_u24 v3, 2560, v3
    v_add_u32 v2, v2, v3
    s_waitcnt lgkmcnt(0)
    buffer_load_ushort v4, v2, s[4:7], 0 offen
    buffer_load_ushort v5, v2, s[4:7], 0 offen offset:640
    buffer_load_ushort v6, v2, s[4:7], 0 offen offset:1280
    buffer_load_ushort v7, v2, s[4:7], 0 offen offset:1920
    v_lshlrev_b32 v1, 4, v1
    v_add_u32 v1, {WTG}, v1
    s_waitcnt vmcnt(0)
    v_lshlrev_b32 v4, 16, v4
    v_lshlrev_b32 v5, 16, v5
    v_lshlrev_b32 v6, 16, v6
    v_lshlrev_b32 v7, 16, v7
    buffer_store_dwordx4 v[4:7], v1, s[16:19], 0 offen
    ''')
    a.label('k1_end')
    a('s_endpgm')

from gen_k2 import gen_k2

def desc(name, vgpr, sgpr=102):
    return f'''.section .rodata,"a"
.p2align 6
.amdhsa_kernel {name}
  .amdhsa_next_free_vgpr {vgpr}
  .amdhsa_next_free_sgpr {sgpr}
  .amdhsa_accum_offset {vgpr}
  .amdhsa_group_segment_fixed_size 0
  .amdhsa_kernarg_size 96
  .amdhsa_user_sgpr_count 2
  .amdhsa_user_sgpr_kernarg_segment_ptr 1
  .amdhsa_system_sgpr_workgroup_id_x 1
.end_amdhsa_kernel
'''

def main(out):
    a1 = Asm(); gen_k1(a1)
    a2 = Asm(); gen_k2(a2, globals())
    for nm, a in (('k1', a1), ('k2', a2)):
        for p in check(a.lines):
            print('HAZARD', nm, p)
    s = HDR
    s += '; @launch kernel=k1_kernel grid=(262,1,1) block=(640,1,1) lds=33280\n'
    s += f'; @launch kernel=k2_kernel grid=(250,1,1) block=(512,1,1) lds={LDS2}\n'
    s += '.amdgcn_target "amdgcn-amd-amdhsa--gfx950"\n.text\n'
    for nm, a in (('k1_kernel', a1), ('k2_kernel', a2)):
        s += f'.globl {nm}\n.p2align 8\n.type {nm},@function\n' + a.text()
    s += desc('k1_kernel', 56)
    s += desc('k2_kernel', 256)
    open(out, 'w').write(s)

if __name__ == '__main__':
    main(sys.argv[1] if len(sys.argv) > 1 else 'cdna_kernels/%s.s' % NAME)
```

```python
def gen_k2(a, G):
    XR, AS, WT, REC, CAP, EL, ZERO, HIST, FLAG, START, ONE = [G[k] for k in
        'XR AS WT REC CAP EL ZERO HIST FLAG START ONE'.split()]
    TAB, WTG, SIF, ACC, ENT_STRIDE, PSTR, NSTASH = [G[k] for k in 'TAB WTG SIF ACC ENT_STRIDE PSTR NSTASH'.split()]
    srd, wave_scan = G['srd'], G['wave_scan']

    sW = 's3'
    SX, SA, SWS, SO = 4, 8, 12, 16
    sLo, sWin, sFb, sMore = 's20', 's21', 's22', 's23'
    sN, sP, sRem, sLook = 's24', 's25', 's26', 's27'
    sCn = 28
    sCn2 = 30
    MASK = 32
    sSoff, sInc, sWrapInc = 's64', 's65', 's66'
    sXb = 's67'
    sAb = 's68'
    sPl = 's69'
    sPn = 's70'
    sNst = 's71'
    sR4, sR2 = 's72', 's73'
    sT0, sT1, sT2, sT3 = 's74', 's75', 's76', 's77'
    s512 = 's78'
    sStg = 's79'
    sPm3 = 's80'
    sBase = 's81'
    sFirst = 's82'
    sHi = 's83'
    sNt = 's84'
    sUn = 's85'
    import os
    WD = int(os.environ.get('WD', '0'))
    sWD = 's86'
    PROF = int(os.environ.get('PROF', '0'))
    ANT = os.environ.get('ANT', '')
    EX = os.environ.get('EX', '').split(',')
    XSZ = 0 if int(os.environ.get('NOX', '0')) else 5120000 + 3072
    ASZ = 0 if int(os.environ.get('NOA', '0')) else 20480000
    def seg(i):
        if PROF != 2: return
        a('s_memtime s[88:89]')
        a('s_waitcnt lgkmcnt(0)')
        if i >= 0:
            a('s_sub_u32 s89, s88, s87')
            a(f's_add_u32 s{90+i}, s{90+i}, s89')
        a('s_mov_b32 s87, s88')
    def stamp(i, real=False):
        if not PROF: return
        if PROF == 2 and i in (1, 2, 3):
            a(f's_mov_b32 s{90+i}, 0')
            return
        a(f's_memrealtime s[88:89]' if real else 's_memtime s[88:89]')
        a('s_waitcnt lgkmcnt(0)')
        a(f's_mov_b32 s{90+i}, s88')

    n = [1]
    def alloc(k=1, align=1):
        while n[0] % align: n[0] += 1
        r = n[0]; n[0] += k
        return r
    vLane = alloc()
    vAA = alloc(16, 2)
    vBa = alloc(4); vXc = alloc(4)
    vAbase = alloc(); vAmask = alloc(); vA = alloc()
    vYs = alloc(); vYa = alloc(); vSa = alloc(); vEa = alloc(); vE = alloc()
    vSrc = alloc(4, 2)
    vYv = alloc(); vSl = alloc()
    vAf = alloc(8, 2); vT = alloc(4, 2)
    vB = alloc(16, 2)
    vP = alloc(20)
    vSt = alloc(4 * NSTASH)
    assert n[0] <= 128, n[0]
    print('vgprs used below acc:', n[0])
    ACC0 = 128
    def acc(T, ct): return ACC0 + (T * 4 + ct) * 16
    def vr(b, k): return f'v[{b}:{b+k-1}]'

    a.label('k2_kernel')
    a('s_cmp_ge_u32 s2, 250')
    a('s_cbranch_scc1 k2_end')
    stamp(0)
    stamp(8, True)
    srd(a, SWS, 88, 0x10000000)
    srd(a, SX, 0, 5120000 + 3072)
    srd(a, SA, 16, 20480000)
    srd(a, SO, 72, 5120000)
    a(f'''
    v_lshrrev_b32 v2, 6, v0
    v_and_b32 v{vLane}, 63, v0
    v_readfirstlane_b32 {sW}, v2
    s_and_b32 {sT0}, s2, 7
    s_lshl_b32 {sT0}, {sT0}, 5
    s_lshr_b32 {sT1}, s2, 3
    s_add_u32 {sT0}, {sT0}, {sT1}
    s_lshl_b32 {sT0}, {sT0}, 2
    s_add_u32 {sT0}, {sT0}, {TAB}
    s_lshl_b32 {sT1}, {sW}, 15
    s_add_u32 {sT0}, {sT0}, {sT1}
    v_and_b32 v2, 31, v0
    v_lshlrev_b32 v2, 10, v2
    v_add_u32 v2, {sT0}, v2
    s_lshl_b32 {sXb}, {sW}, 13
    s_lshl_b32 {sAb}, {sW}, 12
    s_add_u32 {sAb}, {sAb}, {AS}
    s_movk_i32 {s512}, 0x200
    s_mov_b32 {sHi}, 0xffff0000
    s_mov_b32 {sLo}, 0
    s_mov_b32 {sWin}, 32
    s_mov_b32 {sFb}, 0
    s_mov_b32 {sFirst}, 1
    s_mov_b32 {sWD}, 400000
    v_lshlrev_b32 v3, 4, v{vLane}
    s_lshl_b32 {sT1}, {sW}, 10
    s_add_u32 {sT2}, {sT1}, {WTG}
    v_add_u32 v4, {sT2}, v3
    s_add_u32 {sT1}, {sT1}, {WT}
    s_mov_b32 m0, {sT1}
    s_waitcnt lgkmcnt(0)
    s_sub_u32 s{SX}, s{SX}, 3072
    s_subb_u32 s{SX+1}, s{SX+1}, 0
    buffer_load_dword v126, v2, s[{SWS}:{SWS+3}], 0 offen
    buffer_load_dwordx4 v4, s[{SWS}:{SWS+3}], 0 offen lds
    s_add_u32 m0, {sT1}, 8192
    v_add_u32 v5, 8192, v4
    buffer_load_dwordx4 v5, s[{SWS}:{SWS+3}], 0 offen lds
    s_cmp_ge_u32 {sW}, 4
    s_cbranch_scc1 k2_w2
    s_add_u32 m0, {sT1}, 16384
    v_add_u32 v5, 16384, v4
    buffer_load_dwordx4 v5, s[{SWS}:{SWS+3}], 0 offen lds
    ''')
    a.label('k2_w2')
    vTab = 126
    a(f'''
    v_bfe_u32 v2, v{vLane}, 2, 2          ; r
    v_and_b32 v3, 3, v{vLane}             ; c'
    v_lshrrev_b32 v4, 5, v{vLane}         ; hi
    v_bfe_u32 v5, v{vLane}, 4, 1
    v_lshlrev_b32 v6, 10, v2
    v_lshl_add_u32 v6, v4, 9, v6
    v_lshl_add_u32 v6, v5, 5, v6
    v_lshl_add_u32 v6, v3, 3, v6
    v_add_u32 v6, {sXb}, v6
    ''')
    for ct in range(4):
        a(f'v_xor_b32 v7, {ct}, v2')
        a(f'v_lshl_add_u32 v{vBa+ct}, v7, 6, v6')
    a(f'v_and_b32 v7, 15, v{vLane}')
    for r in range(4):
        a(f'v_xor_b32 v8, {4*r}, v7')
        a(f'v_lshlrev_b32 v8, 4, v8')
        a(f'v_add_u32 v{vXc+r}, {(3-r)*1024}, v8')
    a(f'''
    v_lshrrev_b32 v8, 1, v2
    v_lshlrev_b32 v8, 5, v8
    v_lshl_add_u32 v8, v4, 8, v8
    v_lshl_add_u32 v8, v3, 3, v8
    v_add_u32 v8, {sAb}, v8
    v_lshlrev_b32 v9, 3, v3
    v_add_u32 v9, {ZERO+128}, v9
    v_and_b32 v10, 1, v2
    v_cmp_eq_u32 vcc, 1, v10
    v_mov_b32 v11, 0xc00
    s_nop 0
    v_cndmask_b32 v{vAbase}, v9, v8, vcc
    v_cndmask_b32 v{vAmask}, 0, v11, vcc
    v_lshlrev_b32 v8, 4, v{vLane}
    v_add_u32 v{vSl}, {sAb}, v8
    ''')

    a.label('k2_round')
    a(f'''
    v_lshlrev_b32 v2, 4, v0
    v_add_u32 v3, {REC}, v2
    v_mov_b32 v4, 0
    v_mov_b32 v5, {sHi}
    v_mov_b32 v6, 0
    v_mov_b32 v7, {sHi}
    v_mov_b32 v8, 0x7fffff00
    v_mov_b32 v9, 0x7fffff00
    v_mov_b32 v10, 0x7fffff00
    v_mov_b32 v11, 0x7fffff00
    ds_write_b128 v3, v[4:7]
    ds_write_b128 v3, v[4:7] offset:8192
    ds_write_b128 v3, v[4:7] offset:16384
    ds_write_b128 v3, v[8:11] offset:{EL-REC}
    s_cmp_ge_u32 {sW}, 6
    s_cbranch_scc1 k2_pf_done
    ds_write_b128 v3, v[8:11] offset:{EL-REC+8192}
    s_cmp_ge_u32 {sW}, 4
    s_cbranch_scc1 k2_pf_done
    ds_write_b128 v3, v[4:7] offset:24576
    s_cmp_ge_u32 {sW}, 2
    s_cbranch_scc1 k2_pf_done
    v_cmp_eq_u32 vcc, 127, v0
    v_mov_b32 v12, 0x3f80
    v_mov_b32 v13, 0
    v_cndmask_b32 v12, 0, v12, vcc
    v_mov_b32 v14, 0
    v_mov_b32 v15, 0
    ds_write_b128 v3, v[12:15] offset:{ZERO-REC}
    ''')
    a.label('k2_pf_done')
    def ent(k, h): return 128 + (2*k + h) * 4
    def rnk(k, h): return 128 + (2*k + h) * 4 + 3
    def sla(k, h): return 192 + 2*k + h
    def msk(k, h): return MASK + 2 * (2*k + h)
    a(f'''
    v_lshrrev_b32 v2, 4, v{vLane}
    v_lshlrev_b32 v3, 2, v2
    s_lshl_b32 {sT0}, {sW}, 5
    v_add_u32 v2, {sT0}, v2
    v_mul_u32_u24 v2, {ENT_STRIDE}, v2
    v_and_b32 v4, 15, v{vLane}
    v_add_u32 v4, {sLo}, v4
    v_mad_u32_u24 v2, v4, 12, v2
    v_add_u32 v5, 16, v4
    s_add_u32 {sT1}, {sLo}, {sWin}
    s_waitcnt lgkmcnt(0)
    s_barrier
    s_waitcnt vmcnt(0)
    ''')
    stamp(1)
    for k in range(8):
        a(f'ds_bpermute_b32 v{208+k}, v3, v{vTab} offset:{16*k}')
    a(f'''
    v_lshrrev_b32 v6, 16, v{vTab}
    v_cmp_lt_u32 vcc, {sT1}, v6
    s_cmp_eq_u64 vcc, 0
    s_cbranch_scc1 k2_noflag
    v_mov_b32 v6, {FLAG}
    v_mov_b32 v7, 1
    ds_write_b32 v6, v7
    ''')
    a.label('k2_noflag')
    a('s_waitcnt lgkmcnt(0)')
    for k in range(8):
        a(f'''
        v_lshrrev_b32 v6, 16, v{208+k}
        v_and_b32 v7, 0xffff, v{208+k}
        v_min_u32 v6, {sT1}, v6
        v_mad_u32_u24 v{208+k}, v7, 12, v2
        v_cmp_lt_u32 s[{msk(k,0)}:{msk(k,0)+1}], v4, v6
        v_cmp_lt_u32 s[{msk(k,1)}:{msk(k,1)+1}], v5, v6
        v_add_u32 v{208+k}, {4*k*ENT_STRIDE}, v{208+k}
        s_mov_b64 exec, s[{msk(k,0)}:{msk(k,0)+1}]
        s_cbranch_execz k2_ld{k}
        buffer_load_dwordx3 {vr(ent(k,0),3)}, v{208+k}, s[{SWS}:{SWS+3}], 0 offen
        s_mov_b64 exec, s[{msk(k,1)}:{msk(k,1)+1}]
        s_cbranch_execz k2_ld{k}
        buffer_load_dwordx3 {vr(ent(k,1),3)}, v{208+k}, s[{SWS}:{SWS+3}], 0 offen offset:192
        ''')
        a.label(f'k2_ld{k}')
        a('s_mov_b64 exec, -1')
    a(f'''
    v_mov_b32 v6, 1
    v_mov_b32 v7, {HIST & ~0xffff}
    s_waitcnt vmcnt(0)
    ''')
    stamp(2)
    for k in range(8):
        for h in range(2):
            a(f'''
            s_mov_b64 exec, s[{msk(k,h)}:{msk(k,h)+1}]
            s_cbranch_execz k2_h{k}
            v_lshrrev_b32 v8, 26, v{ent(k,h)+2}
            v_lshl_add_u32 v{sla(k,h)}, v8, 2, v7
            ds_add_rtn_u32 v{rnk(k,h)}, v{sla(k,h)}, v6 offset:{HIST & 0xffff}
            ''')
        a.label(f'k2_h{k}')
    a(f'''
    s_mov_b64 exec, -1
    v_lshl_add_u32 v8, v{vLane}, 2, v7
    v_mov_b32 v9, {FLAG}
    s_waitcnt lgkmcnt(0)
    s_barrier
    ds_read_b32 v10, v8 offset:{HIST & 0xffff}
    ds_read_b32 v11, v9
    v_and_b32 v12, 7, v{vLane}
    v_cmp_gt_u32 s[{sT2[1:]}:{sT3[1:]}], 5, v12
    v_cmp_eq_u32 s[{sT0[1:]}:{sT1[1:]}], 4, v12
    v_and_b32 v13, 56, v{vLane}
    s_waitcnt lgkmcnt(0)
    v_add_u32 v10, 15, v10
    v_lshrrev_b32 v10, 4, v10
    v_max_u32 v10, 1, v10
    v_cndmask_b32 v10, 0, v10, s[{sT2[1:]}:{sT3[1:]}]
    v_and_b32 v14, 1, v10
    v_cmp_eq_u32 vcc, 1, v14
    v_readfirstlane_b32 {sMore}, v11
    s_nop 0
    v_lshrrev_b64 v[14:15], v13, vcc
    v_and_b32 v14, 31, v14
    v_bcnt_u32_b32 v14, v14, 0
    v_and_b32 v14, 1, v14
    v_cndmask_b32 v14, 0, v14, s[{sT0[1:]}:{sT1[1:]}]
    v_add_u32 v10, v10, v14               ; nb
    v_mov_b32 v11, v10
    ''')
    wave_scan(a, 'v11')
    a(f'''
    v_sub_u32 v12, v11, v10
    v_lshlrev_b32 v12, 4, v12
    ds_write_b32 v8, v12 offset:{START & 0xffff}
    v_readlane_b32 {sT0}, v11, 63
    s_cmp_lg_u32 {sFb}, 0
    s_cbranch_scc1 k2_fits
    s_cmp_gt_u32 {sT0}, {CAP // 16}
    s_cbranch_scc1 k2_tofb
    s_cmp_eq_u32 {sMore}, 0
    s_cbranch_scc1 k2_fits
    ''')
    a.label('k2_tofb')
    a(f'''
    s_mov_b32 {sFb}, 1
    s_mov_b32 {sWin}, 8
    s_waitcnt lgkmcnt(0)
    s_barrier
    s_branch k2_round
    ''')
    a.label('k2_fits')
    for k in range(8):
        for h in range(2):
            a(f'''
            s_mov_b64 exec, s[{msk(k,h)}:{msk(k,h)+1}]
            s_cbranch_execz k2_s{k}
            ds_read_b32 v{sla(k,h)}, v{sla(k,h)} offset:{START & 0xffff}
            ''')
        a.label(f'k2_s{k}')
    a(f'''
    s_mov_b64 exec, -1
    s_lshl_b32 {sT0}, {sW}, 3
    v_mov_b32 v13, {REC}
    v_mov_b32 v14, {EL}
    v_readlane_b32 {sBase}, v12, {sT0}
    s_add_u32 {sT1}, {sT0}, 7
    v_readlane_b32 {sN}, v11, {sT1}
    ''')
    for r in range(4, -1, -1):
        a(f's_add_u32 {sT1}, {sT0}, {r}')
        a(f'v_readlane_b32 {sT2}, v10, {sT1}')
        if r == 4:
            a(f's_mov_b32 s{sCn}, {sT2}')
            a(f's_mov_b32 s{sCn+1}, 0')
        else:
            a(f's_lshl_b64 s[{sCn}:{sCn+1}], s[{sCn}:{sCn+1}], 12')
            a(f's_or_b32 s{sCn}, s{sCn}, {sT2}')
    a(f'''
    s_sub_u32 s{sCn}, s{sCn}, 0x01001001
    s_subb_u32 s{sCn+1}, s{sCn+1}, 0x00010010
    s_lshr_b32 {sT1}, {sBase}, 4
    s_sub_u32 {sN}, {sN}, {sT1}
    s_lshr_b32 {sP}, {sN}, 1
    s_waitcnt lgkmcnt(0)
    ''')
    for k in range(8):
        for h in range(2):
            e = ent(k, h)
            a(f'''
            s_mov_b64 exec, s[{msk(k,h)}:{msk(k,h)+1}]
            s_cbranch_execz k2_t{k}
            v_add_u32 v8, v{sla(k,h)}, v{rnk(k,h)}
            v_lshl_add_u32 v9, v8, 3, v13
            v_lshl_add_u32 v8, v8, 2, v14
            v_and_b32 v{e+2}, 0x3ffffff, v{e+2}
            ds_write2_b32 v9, v{e}, v{e+1} offset0:0 offset1:1
            ds_write_b32 v8, v{e+2}
            ''')
        a.label(f'k2_t{k}')
    a(f'''
    s_mov_b64 exec, -1
    s_lshl_b32 {sT0}, {sBase}, 3
    s_add_u32 {sT0}, {sT0}, {REC}
    v_lshrrev_b32 v2, 4, v{vLane}
    v_lshlrev_b32 v3, 5, v2
    v_add_u32 v{vSa}, {sT0}, v3
    s_lshl_b32 {sT1}, {sBase}, 2
    s_add_u32 {sT1}, {sT1}, {EL}
    v_lshrrev_b32 v3, 1, v{vLane}
    v_lshlrev_b32 v3, 2, v3
    v_add_u32 v{vEa}, {sT1}, v3
    s_sub_u32 {sPm3}, {sP}, 3
    s_min_u32 {sNst}, {sPm3}, {NSTASH}
    s_and_b32 {sStg}, {sP}, 3
    s_lshl_b32 {sStg}, {sStg}, 10
    s_lshl_b32 {sWrapInc}, {sN}, 7
    s_sub_u32 {sWrapInc}, 256, {sWrapInc}
    s_sub_u32 {sLook}, {sN}, 4
    s_mov_b32 {sSoff}, 0
    s_mov_b32 s{SX+2}, {XSZ}
    s_mov_b32 s{SA+2}, {ASZ}
    v_mov_b32 v{vYv}, 0
    ''')
    def set_ya():
        a(f'''
        s_lshl_b32 {sT0}, {sBase}, 3
        s_add_u32 {sT0}, {sT0}, {REC - 2}
        v_bfe_u32 v{vT}, v{vLane}, 3, 1
        v_bfe_u32 v{vT+1}, v{vLane}, 4, 1
        v_lshl_add_u32 v{vT}, v{vT}, 1, v{vT+1}      ; y
        v_and_b32 v{vT+1}, 7, v{vLane}
        v_lshrrev_b32 v{vT+2}, 5, v{vLane}
        v_lshl_add_u32 v{vT+1}, v{vT+2}, 3, v{vT+1}
        v_lshlrev_b32 v{vT+1}, 3, v{vT+1}
        v_lshl_add_u32 v{vT+1}, v{vT}, 1, v{vT+1}
        v_add_u32 v{vT+1}, {sT0}, v{vT+1}
        v_cmp_eq_u32 vcc, 0, v{vT}
        v_mov_b32 v{vT+2}, {ONE}
        v_mov_b32 v{vT+3}, 0x80
        v_cndmask_b32 v{vYa}, v{vT+1}, v{vT+2}, vcc
        v_cndmask_b32 v{vYs}, v{vT+3}, 0, vcc
        ''')
    set_ya()
    a('s_waitcnt lgkmcnt(0)')
    a('s_barrier')
    stamp(3)

    PRIO = int(os.environ.get('PRIO', '1'))
    def src_reads(off):
        o = off // 4
        return [f'ds_read2_b32 v[{vSrc}:{vSrc+1}], v{vSa} offset0:{o+1} offset1:{o+3}',
                f'ds_read2_b32 v[{vSrc+2}:{vSrc+3}], v{vSa} offset0:{o+5} offset1:{o+7}']
    def src_addr(b=None):
        b = vSrc if b is None else b
        return [f'v_mad_u32_u16 v{b+r}, v{b+r}, {s512}, v{vXc+r} op_sel:[1,0,0,0]' for r in range(4)]
    def x_dma(r, b=None):
        b = vSrc if b is None else b
        return f'buffer_load_dwordx4 v{b+r}, s[{SX}:{SX+3}], {sSoff} offen offset:{r*1024} lds'
    def a_reads(par):
        return [f'ds_read_b64_tr_b16 v[{vAf+2*u}:{vAf+2*u+1}], v{vA} offset:{par*512 + u*64}' for u in range(4)] + \
               [f'ds_read_u16_d16_hi v{vYv}, v{vYa}', f'v_add_u32 v{vYa}, v{vYa}, v{vYs}']
    def aprep(buf):
        out = []
        for T in range(2):
            for jj in range(4):
                t0 = (vAA + buf*8 + 4 + (jj & 1) * 2) if T == 0 else vAf + 2*jj
                out.append(f'v_mul_f32_dpp v{t0}, v{vYv}, v{vAf+2*jj} row_newbcast:{8*T+2*jj} row_mask:0xf bank_mask:0xf')
                out.append(f'v_mul_f32_dpp v{t0+1}, v{vYv}, v{vAf+2*jj+1} row_newbcast:{8*T+2*jj+1} row_mask:0xf bank_mask:0xf')
                out.append(f'v_cvt_pk_bf16_f32 v{vAA+buf*8+T*4+jj}, v{t0}, v{t0+1}')
        return out
    def emit(ls):
        for l in ls:
            for x in l.strip().split('\n'):
                x = x.strip()
                if not x: continue
                if x.endswith(':'): a.label(x[:-1])
                else: a(x)
    def stash_store(lbl):
        return [f"""
        s_cmp_ge_u32 {sPn}, {sNst}
        s_cbranch_scc1 {lbl}
        s_lshl_b32 {sT0}, {sPn}, 2
        s_set_gpr_idx_on {sT0}, gpr_idx(DST)
        v_mov_b32 v{vSt}, v{vT}
        v_mov_b32 v{vSt+1}, v{vT+1}
        v_mov_b32 v{vSt+2}, v{vT+2}
        v_mov_b32 v{vSt+3}, v{vT+3}
        s_set_gpr_idx_off
        {lbl}:
        """]
    cold = []
    def restore(lbl):
        cold.append(f"""
        {lbl}_g:
        s_lshl_b32 {sT0}, {sPn}, 7
        v_add_u32 v{vE}, {sT0}, v{vEa}
        ds_read_b32 v{vE}, v{vE}
        s_add_u32 m0, {sAb}, {sStg}
        s_waitcnt lgkmcnt(0)
        v_and_or_b32 v{vE}, v{vXc}, 16, v{vE}
        buffer_load_dwordx4 v{vE}, s[{SA}:{SA+3}], 0 offen {ANT} lds
        s_waitcnt vmcnt(0)
        s_branch {lbl}_done
        """)
        return [f"""
        s_and_b32 {sT0}, {sPn}, 3
        s_lshl_b32 {sT0}, {sT0}, 10
        s_cmp_lt_u32 {sPn}, {sPm3}
        s_cselect_b32 {sT0}, {sStg}, {sT0}
        v_and_or_b32 v{vA}, {sT0}, v{vAmask}, v{vAbase}
        s_cbranch_scc0 {lbl}_done
        s_cmp_ge_u32 {sPn}, {sNst}
        s_cbranch_scc1 {lbl}_g
        s_lshl_b32 {sT0}, {sPn}, 2
        s_set_gpr_idx_on {sT0}, gpr_idx(SRC0)
        v_mov_b32 v{vT}, v{vSt}
        v_mov_b32 v{vT+1}, v{vSt+1}
        v_mov_b32 v{vT+2}, v{vSt+2}
        v_mov_b32 v{vT+3}, v{vSt+3}
        s_set_gpr_idx_off
        v_or_b32 v{vE}, {sStg}, v{vSl}
        ds_write_b128 v{vE}, {vr(vT,4)}
        {lbl}_done:
        """]

    def step(ps, par, first):
        L = f'k2_p{ps}{"eo"[par]}{"cf"[first]}'
        a.label(L)
        if WD:
            a(f's_sub_u32 {sWD}, {sWD}, 1')
            a('s_cbranch_scc1 k2_wd')
        if first and PRIO: a('s_setprio 2')
        vm = 5 if ps == 1 else 4
        seg(3 if first else 2)
        a(f's_waitcnt vmcnt({vm})')
        seg(1)
        for ct in range(4):
            for u in range(2):
                a(f'ds_read_b64_tr_b16 v[{vB+ct*4+2*u}:{vB+ct*4+2*u+1}], v{vBa+ct} offset:{par*4096 + u*256}')
        a('s_waitcnt lgkmcnt(8)')
        emit(src_addr())
        if par == 0 and ps == 1:
            a(f'v_and_or_b32 v{vE}, v{vXc}, 16, v{vE}')
        ap = aprep(1 - par)
        emit(ap[:12])
        mf = []
        for ct in range(4):
            for T in range(2):
                c = '0' if first else vr(acc(T, ct), 16)
                mf.append(f'v_mfma_f32_32x32x16_bf16 {vr(acc(T,ct),16)}, {vr(vAA+par*8+T*4,4)}, {vr(vB+ct*4,4)}, {c}')
        g = [[] for _ in range(8)]
        g[0] += [f's_add_u32 m0, {sXb}, {par*4096}'] + ap[12:15]
        g[1] += ['s_waitcnt lgkmcnt(0)', x_dma(0)] + ap[15:18]
        g[2] += [x_dma(1)] + ap[18:21]
        g[3] += [x_dma(2)] + ap[21:24]
        g[4] += [x_dma(3)]
        if par == 0:
            if ps == 1:
                g[4] += [f"""
                s_and_b32 {sT0}, {sPl}, 3
                s_lshl_b32 {sT0}, {sT0}, 10
                s_add_u32 {sT0}, {sT0}, {sAb}
                s_cmp_lt_u32 {sPl}, {sP}
                s_cselect_b32 s{SA+2}, s{SA+2}, 0
                s_cselect_b32 m0, {sT0}, {ZERO}
                """]
                g[5] += [f"""
                s_add_u32 {sPl}, {sPl}, 1
                buffer_load_dwordx4 v{vE}, s[{SA}:{SA+3}], 0 offen {ANT} lds
                """] + stash_store(L + '_st')
                g[6] += [f"""
                s_add_u32 {sPn}, {sPn}, 1
                s_and_b32 {sT0}, {sPn}, 3
                s_lshl_b32 {sT0}, {sT0}, 10
                v_and_or_b32 v{vA}, {sT0}, v{vAmask}, v{vAbase}
                """]
            else:
                g[4] += [f's_add_u32 {sPn}, {sPn}, 1']
                g[5] += restore(L + '_r')
            g[6] += src_reads(128)
            g[7] += a_reads(0)
        else:
            g[4] += [f's_cmp_eq_u32 {sLook}, 0']
            if ps == 1:
                g[4] += [f"""
                s_cselect_b32 {sInc}, {sWrapInc}, 0x100
                s_cselect_b32 {sSoff}, 0x100, {sSoff}
                s_cselect_b32 {sT0}, {sN}, 0
                s_add_u32 {sLook}, {sLook}, {sT0}
                s_sub_u32 {sLook}, {sLook}, 2
                v_add_u32 v{vSa}, {sInc}, v{vSa}
                """]
                g[5] += [f"""
                s_and_b32 {sT0}, {sPn}, 3
                s_lshl_b32 {sT0}, {sT0}, 10
                v_or_b32 v{vE}, {sT0}, v{vSl}
                ds_read_b128 {vr(vT,4)}, v{vE}
                ds_read_b32 v{vE}, v{vEa}
                v_add_u32 v{vEa}, 0x80, v{vEa}
                """]
            else:
                g[4] += [f"""
                s_cselect_b32 s{SX+2}, 0, s{SX+2}
                s_sub_u32 {sLook}, {sLook}, 2
                v_add_u32 v{vSa}, 0x100, v{vSa}
                """]
            g[5] += src_reads(0)
            g[6] += a_reads(1)
        a('s_waitcnt lgkmcnt(6)')
        for m in range(8):
            a(mf[m])
            emit(g[m])
        a(f's_sub_u32 {sRem}, {sRem}, 1')
        a(f's_cbranch_scc1 k2_epi{ps}{"eo"[par]}')

    vWa = 0
    def epilogue(ps, par):
        a.label(f'k2_epi{ps}{"eo"[par]}')
        seg(2)
        if PRIO: a('s_setprio 0')
        if ps == 1:
            plan = [(2, [('P01_0', 1, 1, 0), ('P01_1', 1, 2, 0), ('P01_2', 1, 3, 0)]),
                    (0, [('P00', 1, 0, 0)]),
                    (4, [('PX2', -1, 2, 1), ('PX1', 1, 3, 1)]),
                    (3, [('P10_0', 1, 0, 1)]),
                    (1, [('P11', 1, 1, 1)])]
        else:
            plan = [(4, [('PX2', 1, 1, 0), ('PX0', -1, 3, 0), ('PX1', -1, 1, 1), ('PX0', 1, 2, 1)]),
                    (3, [('P10_1', 1, 0, 0), ('P10_2', 1, 0, 1)]),
                    (1, [('P11', 1, 2, 0), ('P11', 1, 3, 1)])]
        units = [(k, cc, terms) for (k, terms) in plan for cc in range(2)]
        free = [vB, vB + 8, vAA + par * 8]
        wbuf = {}
        nload = [0]
        def issue():
            while free and nload[0] < len(units):
                k, cc, _ = units[nload[0]]
                b = free.pop(0)
                wbuf[nload[0]] = b
                for dh in range(2):
                    a(f'ds_read_b128 {vr(b + dh*4, 4)}, v{vWa} offset:{k*4096 + dh*2048 + cc*512}')
                nload[0] += 1
        issue()
        if ps == 2:
            a(f"""
            s_set_gpr_idx_on {sR4}, gpr_idx(SRC0)
            v_mov_b32 v{vT}, v{vP}
            v_mov_b32 v{vT+1}, v{vP+2}
            v_mov_b32 v{vT+2}, v{vP+3}
            s_set_gpr_idx_off
            s_nop 3
            """)
        home = {}
        started = set()
        for i, (k, cc, terms) in enumerate(units):
            assert 2 * (nload[0] - i - 1) <= 15
            a(f's_waitcnt lgkmcnt({2 * (nload[0] - i - 1)})')
            w = wbuf[i]
            ops = []
            rel = []
            for (nm, sg, y, mh) in terms:
                base = acc(y >> 1, mh * 2 + cc) + (y & 1) * 8
                if nm not in home:
                    assert cc == 0
                    home[nm] = base
                else:
                    rel.append(base)
                sreg = home[nm] + 2 * cc
                neg = ' neg_lo:[1,0,0] neg_hi:[1,0,0]' if sg < 0 else ''
                lst = []
                for q in range(4):
                    if (nm, cc) not in started:
                        started.add((nm, cc))
                        lst.append(f'v_pk_mul_f32 {vr(sreg,2)}, {vr(base+2*q,2)}, {vr(w+2*q,2)}' + neg.replace(',0]', ']'))
                    else:
                        lst.append(f'v_pk_fma_f32 {vr(sreg,2)}, {vr(base+2*q,2)}, {vr(w+2*q,2)}, {vr(sreg,2)}' + neg)
                ops.append((nm, lst))
            seen = []
            groups = []
            for nm, lst in ops:
                if nm in seen: groups.append([]); seen = []
                if not groups: groups.append([])
                groups[-1].append(lst); seen.append(nm)
            for gr in groups:
                for q in range(4):
                    for lst in gr: a(lst[q])
            free.extend(rel + [w])
            issue()
        names = list(home.keys())
        for nm in names:
            h = home[nm]
            a(f'v_add_f32 v{h}, v{h}, v{h+1}')
            a(f'v_add_f32 v{h+2}, v{h+2}, v{h+3}')
        for nm in names:
            a(f'v_permlane32_swap_b32 v{home[nm]}, v{home[nm]+2}')
        for nm in names:
            a(f'v_add_f32 v{home[nm]}, v{home[nm]}, v{home[nm]+2}')
        S = lambda nm: f'v{home[nm]}'
        if ps == 1:
            a(f"""
            s_lshr_b64 s[{sCn2}:{sCn2+1}], s[{sCn2}:{sCn2+1}], 12
            s_set_gpr_idx_on {sR4}, gpr_idx(DST)
            v_cvt_pk_bf16_f32 v{vP}, {S('P00')}, {S('P11')}
            v_cvt_pk_bf16_f32 v{vP+1}, {S('P01_0')}, {S('P10_0')}
            v_cvt_pk_bf16_f32 v{vP+2}, {S('P01_1')}, {S('PX1')}
            v_cvt_pk_bf16_f32 v{vP+3}, {S('P01_2')}, {S('PX2')}
            s_set_gpr_idx_off
            s_add_u32 {sR4}, {sR4}, 4
            """)
        else:
            a(f"""
            v_and_b32 v{vB+4}, {sHi}, v{vT}
            v_and_b32 v{vB+5}, {sHi}, v{vT+1}
            v_and_b32 v{vB+6}, {sHi}, v{vT+2}
            v_add_f32 {S('P11')}, {S('P11')}, v{vB+4}
            v_add_f32 {S('PX1')}, {S('PX1')}, v{vB+5}
            v_add_f32 {S('PX2')}, {S('PX2')}, v{vB+6}
            v_lshlrev_b32 v{vT}, 16, v{vT}
            v_lshlrev_b32 v{vT+1}, 16, v{vT+1}
            v_lshlrev_b32 v{vT+2}, 16, v{vT+2}
            s_set_gpr_idx_on {sR4}, gpr_idx(DST)
            v_cvt_pk_bf16_f32 v{vP}, v{vT}, {S('P11')}
            v_cvt_pk_bf16_f32 v{vP+2}, v{vT+1}, {S('P10_1')}
            v_cvt_pk_bf16_f32 v{vP+3}, v{vT+2}, {S('P10_2')}
            s_set_gpr_idx_off
            s_set_gpr_idx_on {sR2}, gpr_idx(DST)
            v_cvt_pk_bf16_f32 v{vSt}, {S('PX0')}, {S('PX1')}
            v_cvt_pk_bf16_f32 v{vSt+1}, {S('PX2')}, {S('PX2')}
            s_set_gpr_idx_off
            s_add_u32 {sR4}, {sR4}, 4
            s_add_u32 {sR2}, {sR2}, 2
            s_lshr_b64 s[{sCn2}:{sCn2+1}], s[{sCn2}:{sCn2+1}], 12
            """)
        a(f's_and_b32 {sRem}, s{sCn2}, 0xfff')
        if par == 1:
            a(f's_cmp_eq_u32 {sR4}, 20')
            a(f's_cbranch_scc1 k2_p{ps}_end')
        a(f's_branch k2_p{ps}{"eo"[1-par]}f')

    def pass_init():
        a(f"""
        s_mov_b64 s[{sCn2}:{sCn2+1}], s[{sCn}:{sCn+1}]
        s_and_b32 {sRem}, s{sCn2}, 0xfff
        s_mov_b32 {sR4}, 0
        s_mov_b32 {sR2}, 0
        s_mov_b32 {sPn}, 0
        """)

    pass_init()
    a(f"""
    ds_read_b32 v{vT}, v{vEa}
    ds_read_b32 v{vT+1}, v{vEa} offset:128
    ds_read_b32 v{vT+2}, v{vEa} offset:256
    ds_read_b32 v{vE}, v{vEa} offset:384
    """)
    emit(src_reads(0))
    a(f"""
    ds_read2_b32 v[{vB}:{vB+1}], v{vSa} offset0:33 offset1:35
    ds_read2_b32 v[{vB+2}:{vB+3}], v{vSa} offset0:37 offset1:39
    v_add_u32 v{vEa}, 0x200, v{vEa}
    v_add_u32 v{vSa}, 0x100, v{vSa}
    s_mov_b32 {sPl}, 3
    s_waitcnt lgkmcnt(4)
    """)
    def adma0(p):
        a(f"""
        s_add_u32 m0, {sAb}, {p*1024}
        v_and_or_b32 v{vT+p}, v{vXc}, 16, v{vT+p}
        buffer_load_dwordx4 v{vT+p}, s[{SA}:{SA+3}], 0 offen {ANT} lds
        """)
    adma0(0)
    adma0(1)
    a(f's_mov_b32 m0, {sXb}')
    a('s_waitcnt lgkmcnt(0)')
    emit(src_addr())
    emit([x_dma(r) for r in range(4)])
    adma0(2)
    emit(src_addr(vB))
    a(f's_add_u32 m0, {sXb}, 4096')
    a('s_nop 0')
    emit([x_dma(r, vB) for r in range(4)])
    emit(src_reads(0))
    a(f"""
    v_mov_b32 v{vA}, v{vAbase}
    v_and_b32 v{vWa}, 31, v{vLane}
    v_lshrrev_b32 v{vAf}, 5, v{vLane}
    v_lshlrev_b32 v{vWa}, 4, v{vWa}
    v_lshl_add_u32 v{vWa}, v{vAf}, 10, v{vWa}
    v_add_u32 v{vWa}, {WT}, v{vWa}
    s_waitcnt vmcnt(10)
    ds_read_b128 {vr(vT,4)}, v{vSl}
    """)
    emit(a_reads(0))
    a('s_waitcnt lgkmcnt(0)')
    emit(aprep(0))
    emit(a_reads(1))
    seg(-1)
    a('s_branch k2_p1ef')

    for ps in (1, 2):
        step(ps, 0, 0)
        step(ps, 1, 0)
        a(f's_branch k2_p{ps}ec')
        step(ps, 0, 1)
        a(f's_branch k2_p{ps}oc')
        step(ps, 1, 1)
        a(f's_branch k2_p{ps}ec')
        epilogue(ps, 0)
        epilogue(ps, 1)
        a.label(f'k2_p{ps}_end')
        stamp(3 + ps)
        if ps == 1:
            pass_init()
            a('s_waitcnt lgkmcnt(0)')
            set_ya()
            a(f"""
            s_add_u32 {sT0}, {sP}, 4
            s_lshl_b32 {sT0}, {sT0}, 7
            v_subrev_u32 v{vEa}, {sT0}, v{vEa}
            s_mov_b32 s{SA+2}, {ASZ}
            """)
            emit(restore('k2_p2_r0'))
            emit(a_reads(0))
            a('s_waitcnt lgkmcnt(0)')
            emit(aprep(0))
            emit(a_reads(1))
            a('s_branch k2_p2ef')

    FR = 128
    PB = 168
    D = vAA
    a(f'''
    s_and_b32 {sT0}, {sW}, 3
    s_lshl_b32 {sT0}, {sT0}, 10
    s_add_u32 {sT0}, {sT0}, {SIF}
    v_lshlrev_b32 v{vT}, 4, v{vLane}
    v_add_u32 v{vT}, {sT0}, v{vT}
    s_waitcnt vmcnt(0)
    ''')
    for f in range(10):
        a(f's_movk_i32 {sT1}, {f*4096}' if f * 4096 < 32768 else f's_mov_b32 {sT1}, {f*4096}')
        a(f'buffer_load_dwordx4 {vr(FR+4*f,4)}, v{vT}, s[{SWS}:{SWS+3}], {sT1} offen')
    a(f'''
    v_lshl_add_u32 v{vT+1}, v{vLane}, 2, {sXb}
    v_lshl_add_u32 v{vT+2}, v{vLane}, 1, {sXb}
    ''')
    for r in range(5):
        o = r * PSTR
        a(f'''
        ds_write_b32 v{vT+1}, v{vP+4*r} offset:{o}
        ds_write_b32 v{vT+1}, v{vP+4*r+1} offset:{o+256}
        ds_write_b32 v{vT+1}, v{vP+4*r+2} offset:{o+640}
        ds_write_b32 v{vT+1}, v{vP+4*r+3} offset:{o+1024}
        ds_write_b16 v{vT+2}, v{vSt+2*r} offset:{o+512}
        ds_write_b16_d16_hi v{vT+2}, v{vSt+2*r} offset:{o+896}
        ds_write_b16 v{vT+2}, v{vSt+2*r+1} offset:{o+1280}
        ''')
    a(f'''
    s_lshr_b32 {sNt}, {sW}, 2
    s_mov_b32 {sUn}, 0
    s_waitcnt lgkmcnt(0)
    s_barrier
    ''')
    stamp(6)
    a.label('k2_unit')
    vn, vq, vpa, vo = vB, vB + 1, vB + 2, vB + 3
    a(f'''
    s_lshl_b32 {sT0}, {sNt}, 4
    v_and_b32 v{vn}, 15, v{vLane}
    v_add_u32 v{vn}, {sT0}, v{vn}
    v_cmp_gt_u32 s[{MASK}:{MASK+1}], 40, v{vn}
    v_min_u32 v{vn}, 39, v{vn}
    v_mul_u32_u24 v{vq}, 52, v{vn}
    v_lshrrev_b32 v{vq}, 8, v{vq}
    v_mad_i32_i24 v{vpa}, v{vq}, -5, v{vn}
    v_mul_u32_u24 v{vpa}, {PSTR}, v{vpa}
    v_lshl_add_u32 v{vpa}, v{vq}, 13, v{vpa}
    v_lshrrev_b32 v{vq}, 4, v{vLane}
    v_lshl_add_u32 v{vpa}, v{vq}, 4, v{vpa}
    ''')
    offs = [f * 64 for f in range(4)] + [256 + j * 384 + f * 64 for j in range(3) for f in range(6)]
    for i, o in enumerate(offs[:10]):
        a(f'ds_read_b128 {vr(PB+4*i,4)}, v{vpa} offset:{o}')
    a(f'''
    s_mul_i32 {sT0}, s2, 40
    v_add_u32 v{vo}, {sT0}, v{vn}
    v_lshlrev_b32 v{vo}, 9, v{vo}
    v_lshl_add_u32 v{vo}, v{vq}, 3, v{vo}
    s_and_b32 {sT0}, {sW}, 3
    s_lshl_b32 {sT0}, {sT0}, 5
    v_add_u32 v{vo}, {sT0}, v{vo}
    s_waitcnt vmcnt(0) lgkmcnt(0)
    ''')
    for i, o in enumerate(offs[10:]):
        a(f'ds_read_b128 {vr(PB+40+4*i,4)}, v{vpa} offset:{o}')
    def mm(i, f, d, firstf):
        c = '0' if firstf else vr(d, 4)
        a(f'v_mfma_f32_16x16x32_bf16 {vr(d,4)}, {vr(FR+4*f,4)}, {vr(PB+4*i,4)}, {c}')
    for f in range(6):
        if f < 4: mm(f, f, D, f == 0)
        mm(4 + f, 4 + f, D + 4, f == 0)
    a('s_waitcnt lgkmcnt(0)')
    for f in range(6):
        mm(10 + f, 4 + f, D + 8, f == 0)
        mm(16 + f, 4 + f, D + 12, f == 0)
    a('s_nop 7')
    a(f'''
    s_cmp_eq_u32 {sFb}, 0
    s_cbranch_scc1 k2_store
    s_lshl_b32 {sT0}, s2, 3
    s_add_u32 {sT0}, {sT0}, {sW}
    s_lshl_b32 {sT0}, {sT0}, 1
    s_add_u32 {sT0}, {sT0}, {sUn}
    s_lshl_b32 {sT0}, {sT0}, 12
    s_add_u32 {sT0}, {sT0}, {ACC}
    v_lshlrev_b32 v{vq}, 4, v{vLane}
    v_add_u32 v{vq}, {sT0}, v{vq}
    s_cmp_lg_u32 {sFirst}, 0
    s_cbranch_scc1 k2_noacc
    ''')
    for i in range(4):
        a(f'buffer_load_dwordx4 {vr(PB+4*i,4)}, v{vq}, s[{SWS}:{SWS+3}], 0 offen offset:{i*1024} sc0 sc1')
    a('s_waitcnt vmcnt(0)')
    for i in range(16):
        a(f'v_add_f32 v{D+i}, v{D+i}, v{PB+i}')
    a.label('k2_noacc')
    a(f'''
    s_cmp_eq_u32 {sMore}, 0
    s_cbranch_scc1 k2_store
    ''')
    for i in range(4):
        a(f'buffer_store_dwordx4 {vr(D+4*i,4)}, v{vq}, s[{SWS}:{SWS+3}], 0 offen offset:{i*1024} sc0 sc1')
    a('s_waitcnt vmcnt(0)')
    a('s_branch k2_next')
    a.label('k2_store')
    g = PB
    for i in range(4):
        a(f'v_mul_f32 v{g+i}, 0xbfb8aa3b, v{D+i}')
    for i in range(4):
        a(f'v_exp_f32 v{g+i}, v{g+i}')
    a('s_nop 0')
    for i in range(4):
        a(f'v_add_f32 v{g+i}, 1.0, v{g+i}')
    for i in range(4):
        a(f'v_rcp_f32 v{g+i}, v{g+i}')
    a('s_nop 0')
    for j in range(3):
        for i in range(4):
            a(f'v_mul_f32 v{D+4+4*j+i}, v{D+4+4*j+i}, v{g+i}')
    for p in range(4):
        a(f'v_cvt_pk_bf16_f32 v{g+4+2*p}, v{D+4*p}, v{D+4*p+1}')
        a(f'v_cvt_pk_bf16_f32 v{g+5+2*p}, v{D+4*p+2}, v{D+4*p+3}')
    a(f's_mov_b64 exec, s[{MASK}:{MASK+1}]')
    for p in range(4):
        a(f'buffer_store_dwordx2 {vr(g+4+2*p,2)}, v{vo}, s[{SO}:{SO+3}], 0 offen offset:{p*128}')
    a('s_mov_b64 exec, -1')
    a.label('k2_next')
    a(f'''
    s_add_u32 {sNt}, {sNt}, 2
    s_add_u32 {sUn}, {sUn}, 1
    s_cmp_lt_u32 {sNt}, 3
    s_cbranch_scc1 k2_unit
    s_cmp_eq_u32 {sFb}, 0
    s_cbranch_scc1 k2_end
    s_cmp_eq_u32 {sMore}, 0
    s_cbranch_scc1 k2_end
    s_add_u32 {sLo}, {sLo}, {sWin}
    s_mov_b32 {sFirst}, 0
    s_and_b32 {sT0}, s2, 7
    s_lshl_b32 {sT0}, {sT0}, 5
    s_lshr_b32 {sT1}, s2, 3
    s_add_u32 {sT0}, {sT0}, {sT1}
    s_lshl_b32 {sT0}, {sT0}, 2
    s_add_u32 {sT0}, {sT0}, {TAB}
    s_lshl_b32 {sT1}, {sW}, 15
    s_add_u32 {sT0}, {sT0}, {sT1}
    s_lshl_b32 {sT1}, {sW}, 6
    v_add_u32 v0, {sT1}, v{vLane}
    v_and_b32 v{vT}, 31, v0
    v_lshlrev_b32 v{vT}, 10, v{vT}
    v_add_u32 v{vT}, {sT0}, v{vT}
    buffer_load_dword v{vTab}, v{vT}, s[{SWS}:{SWS+3}], 0 offen
    s_waitcnt lgkmcnt(0)
    s_barrier
    s_branch k2_round
    ''')
    a.label('k2_end')
    if PROF:
        a('s_cmp_ge_u32 s2, 250')
        a('s_cbranch_scc1 k2_end2')
        a('s_waitcnt vmcnt(0)')
        stamp(7)
        stamp(9, True)
        a(f's_mov_b32 s100, {sN}')
        a(f's_lshl_b32 {sT0}, s2, 3')
        a(f's_add_u32 {sT0}, {sT0}, {sW}')
        a(f's_lshl_b32 {sT0}, {sT0}, 6')
        a(f's_add_u32 {sT0}, {sT0}, 0xA000000')
        a(f'v_mov_b32 v2, {sT0}')
        for i in range(11):
            a(f'v_mov_b32 v3, s{90+i}')
            a(f'buffer_store_dword v3, v2, s[{SWS}:{SWS+3}], 0 offen offset:{4*i}')
        a.label('k2_end2')
    a('s_endpgm')
    if WD:
        a.label('k2_wd')
        a('s_waitcnt vmcnt(0) lgkmcnt(0)')
        a('s_endpgm')
    for c in cold:
        for l in c.strip().split('\n'):
            l = l.strip()
            if l.endswith(':'): a.label(l[:-1])
            else: a(l)
```
